```python
import torch

def _softmax(x, axis=-1):
    return torch.softmax(x, dim=axis)
def _gelu(x):
    return torch.nn.functional.gelu(x, approximate="tanh")
def _silu(x):
    return torch.nn.functional.silu(x)
def _sigmoid(x):
    return torch.sigmoid(x)
def _layernorm(x, axis=-1, eps=1e-5):
    m = x.mean(dim=axis, keepdim=True)
    v = x.var(dim=axis, keepdim=True, unbiased=False)
    return (x - m) / torch.sqrt(v + eps)
def _scatter_add(tgt, idx, src, axis=0):
    return tgt.clone().index_add_(axis, idx, src)
def _segment_sum(src, seg, n):
    out = torch.zeros((n,) + src.shape[1:], dtype=src.dtype)
    return out.index_add_(0, seg, src)
def _pad(x, pw):
    flat = tuple(v for pair in reversed(pw) for v in pair)
    return torch.nn.functional.pad(x, flat)

kernel_name = 'standalone__hybrid_graph_tf_graphgps__graph'

def setup_inputs():

    _w = (lambda a: (lambda t: t.to(torch.bfloat16) if t.is_floating_point() else t)(torch.as_tensor(a)))
    N, deg, D = 12500, 64, 64
    E = N * deg
    src = (lambda lo, hi, *s: torch.randint(lo, hi, s))(0, N, E).to(torch.int64)
    dst = (lambda lo, hi, *s: torch.randint(lo, hi, s))(0, N, E).to(torch.int64)
    deg_cnt = torch.bincount(dst, minlength=N).to(float) + 1.0
    sc = 1.0 / float(D) ** 0.5
    return {
        "x": _w((lambda *s: torch.randn(*s, dtype=torch.bfloat16) * 0.05)(N, D)),
        "src": _w(src),
        "dst": _w(dst),
        "deg_inv": _w((1.0 / deg_cnt).to(float)),
        "w_msg": _w((lambda *s: torch.randn(*s, dtype=torch.bfloat16) * 0.4)(D, D) * sc),
        "wq": _w((lambda *s: torch.randn(*s, dtype=torch.bfloat16) * 1.6)(D, D) * sc),
        "wk": _w((lambda *s: torch.randn(*s, dtype=torch.bfloat16) * 1.6)(D, D) * sc),
        "wv": _w((lambda *s: torch.randn(*s, dtype=torch.bfloat16) * 0.2)(D, D) * sc),
        "w_out": _w((lambda *s: torch.randn(*s, dtype=torch.bfloat16) * 0.2)(D, D) * sc),
    }

def reference(x, src, dst, deg_inv, w_msg, wq, wk, wv, w_out):
    N, D = x.shape[0], x.shape[1]
    h = _layernorm(x, axis=-1)
    m_e = torch.einsum('nd,de->ne', h, w_msg)
    h_local = _segment_sum(m_e[src], dst, N) * deg_inv[:, None]
    q = torch.einsum('nd,de->ne', h, wq)
    k = torch.einsum('nd,de->ne', h, wk)
    v = torch.einsum('nd,de->ne', h, wv)
    logits = torch.einsum('id,jd->ij', q, k) / (float(D) ** 0.5)
    attn = _softmax(logits, axis=-1)
    h_global = torch.einsum('ij,jd->id', attn, v)
    y = torch.einsum('nd,de->ne', h_local + h_global, w_out)
    return x + y
```

```python
from common import *
NULLROW=N*128
R=16
G0=64
EN=16
TB=8
AS=48
AC=52
RK=56
ID=128
def gen_agg(A):
    srd(A,64,26,NCH*TABW*4,WS_TAB)
    base(A,68,WS_EDG)
    A(f"""s_lshl_b32 s28, s60, 2
    v_mul_u32_u24 v1, {TABW*4}, v0
    v_add_u32 v1, s28, v1""")
    for i in range(4):
        A(f"s_mov_b32 s28, {64*TABW*4*i}\nbuffer_load_dword v{TB+i}, v1, s[64:67], s28 offen")
    A(f"""v_and_b32 v2, 15, v0
    v_mov_b32 v4, 0x3f80
    v_mov_b32 v5, 0x3f800000""")
    for i in range(4):
        A(f"""v_cmp_eq_u32 vcc, {2*i}, v2
        s_nop 1
        v_cndmask_b32 v{AS+i}, 0, v4, vcc
        v_cmp_eq_u32 vcc, {2*i+1}, v2
        s_nop 1
        v_cndmask_b32 v{AS+i}, v{AS+i}, v5, vcc""")
    A(f"""v_and_b32 v131, 7, v0
    v_lshlrev_b32 v133, 5, v131
    v_lshlrev_b32 v131, 4, v131
    v_lshrrev_b32 v132, 3, v0
    v_lshlrev_b32 v132, 2, v132
    v_add_u32 v132, s61, v132
    v_lshrrev_b32 v2, 4, v0
    v_lshl_add_u32 v133, v2, 4, v133
    s_add_u32 s28, s61, 8192
    v_add_u32 v133, s28, v133
    v_lshlrev_b32 v134, 4, v0
    v_add_u32 v134, s61, v134
    v_mov_b32 v135, 1
    s_add_u32 s63, s61, 12288
    v_and_b32 v136, 15, v0
    v_lshlrev_b32 v136, 2, v136
    v_add_u32 v136, s63, v136
    v_mov_b32 v140, 0
    v_mov_b32 v141, 0
    v_mov_b32 v142, 0
    v_mov_b32 v143, 0
    v_mov_b32 v144, {NULLROW}
    v_mov_b32 v145, {NULLROW}
    v_mov_b32 v146, {NULLROW}
    v_mov_b32 v147, {NULLROW}""")
    for i in range(4): A(f"ds_write_b128 v134, v[140:143] offset:{8192+1024*i}")
    for i in range(8): A(f"ds_write_b128 v134, v[144:147] offset:{1024*i}")
    A(f"""ds_write_b32 v136, v140
    s_waitcnt vmcnt(0) lgkmcnt(0)
    s_cmp_eq_u32 s62, 0
    s_cbranch_scc1 AG_NOBAR
    s_barrier
    AG_NOBAR:
    s_getpc_b64 s[70:71]
    AG_PC:
    s_add_u32 s70, s70, AG_PROC-AG_PC
    s_addc_u32 s71, s71, 0""")
    for i in range(4):
        A(f"""v_and_b32 v2, 0xffff, v{TB+i}
        v_add_u32 v3, {64*i}, v0
        v_mul_u32_u24 v3, {CHE*4}, v3
        v_lshl_add_u32 v{12+i}, v2, 2, v3
        v_lshrrev_b32 v{TB+i}, 16, v{TB+i}""")
    A("AG_ROUND:")
    for i in range(4):
        for h in range(2):
            l=A.lab("AGL")
            A(f"""v_cmp_lt_u32 vcc, {4*h}, v{TB+i}
            s_nop 1
            s_mov_b64 exec, vcc
            s_cbranch_execz {l}
            global_load_dwordx4 {v(EN+8*i+4*h,4)}, v{12+i}, s[68:69] offset:{16*h}
            {l}:
            s_mov_b64 exec, -1""")
    A("s_waitcnt vmcnt(0)")
    for i in range(4):
        for h in range(2):
            e=EN+8*i+4*h
            skip=A.lab("AGS"); retry=A.lab("AGR")
            for k in range(4):
                A(f"v_cmp_lt_u32 s[{72+2*k}:{73+2*k}], {4*h+k}, v{TB+i}")
            for k in range(4):
                A(f"""v_and_b32 v{RK+4+k}, 15, v{e+k}""")
            A(f"""s_cmp_eq_u64 s[72:73], 0
            s_cbranch_scc1 {skip}
            {retry}:""")
            for k in range(4):
                A(f"""v_lshl_add_u32 v2, v{RK+4+k}, 2, s63
                s_mov_b64 exec, s[{72+2*k}:{73+2*k}]
                ds_add_rtn_u32 v{RK+k}, v2, v135
                s_mov_b64 exec, -1""")
            A("s_movk_i32 s28, 128\ns_waitcnt lgkmcnt(0)")
            for k in range(4):
                A(f"""v_cmp_gt_u32 vcc, s28, v{RK+k}
                v_lshlrev_b32 v2, 9, v{RK+4+k}
                v_lshl_add_u32 v2, v{RK+k}, 2, v2
                v_add_u32 v2, s61, v2
                v_and_b32 v3, -16, v{e+k}
                s_and_b64 exec, vcc, s[{72+2*k}:{73+2*k}]
                ds_write_b32 v2, v3
                s_andn2_b64 s[{72+2*k}:{73+2*k}], s[{72+2*k}:{73+2*k}], exec
                s_mov_b64 exec, -1""")
            A(f"""s_or_b64 s[80:81], s[72:73], s[74:75]
            s_or_b64 s[82:83], s[76:77], s[78:79]
            s_or_b64 s[80:81], s[80:81], s[82:83]
            s_cbranch_scc0 {skip}
            s_swappc_b64 s[84:85], s[70:71]
            s_branch {retry}
            {skip}:""")
    for i in range(4):
        A(f"""v_sub_u32 v{TB+i}, v{TB+i}, 8 clamp
        v_add_u32 v{12+i}, 32, v{12+i}""")
    A(f"""v_or_b32 v2, v{TB}, v{TB+1}
    v_or3_b32 v2, v2, v{TB+2}, v{TB+3}
    v_cmp_ne_u32 vcc, 0, v2
    s_nop 4
    s_cbranch_vccnz AG_ROUND
    s_swappc_b64 s[84:85], s[70:71]""")
    srd(A,64,10,N*2)
    A(f"""s_lshl_b32 s28, s60, 5
    v_lshrrev_b32 v2, 2, v0
    v_lshl_add_u32 v2, v2, 1, s28
    buffer_load_ushort v3, v2, s[64:67], 0 offen
    v_lshlrev_b32 v4, 6, v0
    v_add_u32 v4, s61, v4""")
    for i in range(4): A(f"ds_read_b128 {v(G0+4*i,4)}, v4 offset:{8192+16*i}")
    A(f"""s_lshl_b32 s28, s60, 11
    s_add_u32 s28, s28, {WS_BL}
    s_add_u32 s68, s26, s28
    s_addc_u32 s69, s27, 0
    v_lshlrev_b32 v5, 5, v0
    s_waitcnt vmcnt(0) lgkmcnt(0)
    v_lshlrev_b32 v3, 16, v3""")
    for i in range(16): A(f"v_mul_f32 v{G0+i}, v3, v{G0+i}")
    for i in range(8): A(f"v_cvt_pk_bf16_f32 v{EN+i}, v{G0+2*i}, v{G0+2*i+1}")
    A(f"""global_store_dwordx4 v5, {v(EN,4)}, s[68:69]
    global_store_dwordx4 v5, {v(EN+4,4)}, s[68:69] offset:16
    s_endpgm""")
    A(f"""AG_PROC:
    s_waitcnt lgkmcnt(0)
    ds_read_b32 v137, v136
    s_movk_i32 s28, 128
    s_waitcnt lgkmcnt(0)
    v_min_u32 v137, s28, v137
    v_add_u32 v137, 7, v137
    v_lshrrev_b32 v137, 3, v137
    v_mov_b32 v138, v137
    s_nop 1""")
    for sh in (1,2,4,8):
        A(f"v_add_u32_dpp v138, v138, v138 row_shr:{sh} row_mask:0xf bank_mask:0xf bound_ctrl:0\ns_nop 1")
    A(f"""v_readlane_b32 s91, v138, 15
    v_readlane_b32 s87, v137, 0
    s_mov_b32 s86, 0
    s_mov_b32 s88, 0
    s_mov_b32 s89, 0
    v_mov_b32 v{AC}, 0
    v_mov_b32 v{AC+1}, 0
    v_mov_b32 v{AC+2}, 0
    v_mov_b32 v{AC+3}, 0
    s_nop 2
    s_mov_b32 s90, s87
    s_cmp_eq_u32 s91, 0
    s_cbranch_scc1 AG_PDONE""")
    def adv_issue(idreg):
        a=A.lab("AGI"); b=A.lab("AGI"); c=A.lab("AGI"); d=A.lab("AGI")
        A(f"""{a}:
        s_cmp_lg_u32 s87, 0
        s_cbranch_scc1 {b}
        s_cmp_ge_u32 s86, 15
        s_cbranch_scc1 {c}
        s_add_u32 s86, s86, 1
        s_lshl_b32 s88, s86, 9
        v_readlane_b32 s87, v137, s86
        s_nop 3
        s_branch {a}
        {c}:
        v_mov_b32 v{idreg}, {NULLROW}
        s_branch {d}
        {b}:
        v_add_u32 v2, s88, v132
        ds_read_b32 v{idreg}, v2
        s_sub_u32 s87, s87, 1
        s_add_u32 s88, s88, 32
        {d}:""")
    def issue(r,idreg):
        A(f"""s_waitcnt lgkmcnt(0)
        v_xor_b32 v130, v{idreg}, v131
        buffer_load_dwordx4 {v(G0+4*r,4)}, v130, s[36:39], 0 offen""")
    def adv_consume():
        a=A.lab("AGC"); b=A.lab("AGC")
        A(f"""{a}:
        s_cmp_lg_u32 s90, 0
        s_cbranch_scc1 {b}
        s_add_u32 s89, s89, 1
        s_nop 0
        v_readlane_b32 s90, v137, s89
        s_nop 3
        s_branch {a}
        {b}:""")
    adv_consume()
    adv_issue(ID)
    for r in range(R):
        adv_issue(ID+1-(r&1))
        A("s_waitcnt lgkmcnt(1)" if False else "")
        issue(r,ID+(r&1))
    A("AG_PLOOP:")
    for r in range(R):
        nf=A.lab("AGF")
        A(f"""s_waitcnt vmcnt({R-1})
        {m16(AC,AS,G0+4*r)}
        s_sub_u32 s91, s91, 1
        s_sub_u32 s90, s90, 1
        s_cmp_lg_u32 s90, 0
        s_cbranch_scc1 {nf}
        s_lshl_b32 s28, s89, 8
        v_add_u32 v2, s28, v133
        s_nop 7
        s_mov_b32 exec_hi, 0""")
        for k in range(4): A(f"ds_add_f32 v2, v{AC+k} offset:{4*k}")
        A(f"""s_mov_b32 exec_hi, -1
        s_cmp_eq_u32 s91, 0
        s_cbranch_scc1 AG_PDONE""")
        for k in range(4): A(f"v_mov_b32 v{AC+k}, 0")
        adv_consume()
        A(f"{nf}:")
        adv_issue(ID+1-(r&1))
        issue(r,ID+(r&1))
    A(f"""s_branch AG_PLOOP
    AG_PDONE:
    s_waitcnt vmcnt(0) lgkmcnt(0)""")
    for i in range(8): A(f"ds_write_b128 v134, v[144:147] offset:{1024*i}")
    A(f"""ds_write_b32 v136, v140
    s_waitcnt lgkmcnt(0)
    s_setpc_b64 s[84:85]""")
```

```python
import math, struct
N=12500; NP=12544; E=800000
NCH=250; CHE=3200; NB=782; TABW=784
WS_HT=0x000000; WS_QT=0x200000; WS_WF=0x400000; WS_TAB=0x410000; WS_EDG=0x500000
WS_BL=0x900000; WS_PART=0xB00000; WS_LP=0x1400000
HT_BYTES=NP*128
LOG2E_8=math.log2(math.e)/8.0
def f32(x): return "0x%08x"%struct.unpack("<I",struct.pack("<f",x))[0]
def v(b,n=1): return f"v{b}" if n==1 else f"v[{b}:{b+n-1}]"
def s(b,n=1): return f"s{b}" if n==1 else f"s[{b}:{b+n-1}]"
class Asm:
    def __init__(self): self.L=[]; self.n=0
    def __call__(self,txt):
        for line in txt.split("\n"):
            line=line.strip()
            if not line: continue
            if line.endswith(":") or line.startswith("."): self.L.append(line)
            else: self.L.append("    "+line)
    def lab(self,p="L"):
        self.n+=1; return f"{p}_{self.n}"
    def text(self): return "\n".join(self.L)+"\n"
def m16(d,a,b,c=None):
    cc=v(d,4) if c is None else c
    return f"v_mfma_f32_16x16x32_bf16 {v(d,4)}, {v(a,4)}, {v(b,4)}, {cc}"
def kstart(A,name):
    A(f""".text
.globl {name}
.p2align 8
.type {name},@function
{name}:""")
def kdesc(name,vgpr,sgpr=102):
    return f""".section .rodata,"a"
.p2align 6
.amdhsa_kernel {name}
  .amdhsa_next_free_vgpr {vgpr}
  .amdhsa_next_free_sgpr {sgpr}
  .amdhsa_accum_offset {(vgpr+3)//4*4}
  .amdhsa_group_segment_fixed_size 0
  .amdhsa_kernarg_size 96
  .amdhsa_user_sgpr_count 2
  .amdhsa_user_sgpr_kernarg_segment_ptr 1
  .amdhsa_system_sgpr_workgroup_id_x 1
.end_amdhsa_kernel
"""
def load_args(A):
    A("""s_load_dwordx16 s[4:19], s[0:1], 0
    s_load_dwordx8 s[20:27], s[0:1], 64""")
def base(A,d,off,src=26):
    A(f"""s_add_u32 s{d}, s{src}, {off}
    s_addc_u32 s{d+1}, s{src+1}, 0""")
def srd(A,d,src,nbytes,off=0):
    if off:
        A(f"""s_add_u32 s{d}, s{src}, {off}
        s_addc_u32 s{d+1}, s{src+1}, 0""")
    else:
        A(f"""s_mov_b32 s{d}, s{src}
        s_mov_b32 s{d+1}, s{src+1}""")
    A(f"""s_mov_b32 s{d+2}, {nbytes}
    s_mov_b32 s{d+3}, 0x00020000""")
def xg_reduce(A,x,t0,t1,op="v_add_f32"):
    A(f"""v_mov_b32 v{t0}, v{x}
    v_mov_b32 v{t1}, v{x}
    s_nop 1
    v_permlane16_swap_b32 v{t0}, v{t1}
    s_nop 1
    {op} v{x}, v{t0}, v{t1}
    v_mov_b32 v{t0}, v{x}
    v_mov_b32 v{t1}, v{x}
    s_nop 1
    v_permlane32_swap_b32 v{t0}, v{t1}
    s_nop 1
    {op} v{x}, v{t0}, v{t1}""")
```

```python
from common import *
K1_NBIN=NCH; K1_NLN=98; K1_GRID=K1_NBIN+K1_NLN+1; K1_LDS=16896
def gen_k1(A,name="k1_kernel"):
    kstart(A,name)
    A(f"""s_cmp_ge_u32 s2, {K1_GRID}
    s_cbranch_scc1 K1_END""")
    load_args(A)
    A(f"""v_lshrrev_b32 v1, 6, v0
    v_and_b32 v2, 63, v0
    s_nop 0
    v_readfirstlane_b32 s3, v1
    s_waitcnt lgkmcnt(0)
    s_cmp_ge_u32 s2, {K1_NBIN}
    s_cbranch_scc1 K1_NOTBIN""")
    D,S,BK,RK=8,24,40,56
    A(f"""s_movk_i32 s34, 200
    s_movk_i32 s35, 196
    v_lshlrev_b32 v1, 4, v0
    v_add_u32 v2, 6400, v1
    v_cmp_gt_u32 s[30:31], s34, v0
    v_cmp_gt_u32 s[32:33], s35, v0
    s_mul_i32 s28, s2, {CHE*4}
    s_add_u32 s6, s6, s28
    s_addc_u32 s7, s7, 0
    s_add_u32 s8, s8, s28
    s_addc_u32 s9, s9, 0
    v_mov_b32 v4, 0
    v_mov_b32 v5, 0
    v_mov_b32 v6, 0
    v_mov_b32 v7, 0
    v_mov_b32 v3, 1
    s_nop 3
    s_mov_b64 exec, s[30:31]""")
    for arr,sb in ((D,8),(S,6)):
        for i in range(4):
            A(f"global_load_dwordx4 {v(arr+4*i,4)}, v{1+(i>>1)}, s[{sb}:{sb+1}] offset:{3200*(i&1)}")
    A(f"""s_mov_b64 exec, s[32:33]
    ds_write_b128 v1, v[4:7]
    s_mov_b64 exec, -1
    v_mov_b32 v72, 0
    v_mov_b32 v73, 0
    v_mov_b32 v74, 0
    v_mov_b32 v75, 0
    s_waitcnt lgkmcnt(0)
    s_barrier
    s_mov_b64 exec, s[30:31]
    s_waitcnt vmcnt(4)""")
    for k in range(16):
        A(f"""v_lshrrev_b32 v{BK+k}, 2, v{D+k}
        v_and_b32 v{BK+k}, -4, v{BK+k}
        ds_add_rtn_u32 v{RK+k}, v{BK+k}, v3""")
    A("s_waitcnt vmcnt(0)")
    for k in range(16):
        A(f"""v_and_b32 v4, 14, v{S+k}
        v_lshlrev_b32 v{S+k}, 7, v{S+k}
        v_lshl_or_b32 v{S+k}, v4, 3, v{S+k}
        v_and_or_b32 v{S+k}, v{D+k}, 15, v{S+k}""")
    A(f"""s_mov_b64 exec, -1
    s_waitcnt lgkmcnt(0)
    s_barrier
    s_mov_b64 exec, s[32:33]
    ds_read_b128 v[72:75], v1
    s_mov_b64 exec, -1
    s_waitcnt lgkmcnt(0)
    v_add_u32 v76, v72, v73
    v_add_u32 v77, v76, v74
    v_add_u32 v78, v77, v75
    v_mov_b32 v80, v78
    s_nop 1""")
    for sh in (1,2,4,8):
        A(f"""v_add_u32_dpp v80, v80, v80 row_shr:{sh} row_mask:0xf bank_mask:0xf bound_ctrl:0
        s_nop 1""")
    A(f"""v_add_u32_dpp v80, v80, v80 row_bcast:15 row_mask:0xa bank_mask:0xf
    s_nop 1
    v_add_u32_dpp v80, v80, v80 row_bcast:31 row_mask:0xc bank_mask:0xf
    s_lshl_b32 s28, s3, 2
    v_mov_b32 v81, s28
    s_mov_b32 exec_lo, 0
    s_mov_b32 exec_hi, 0x80000000
    ds_write_b32 v81, v80 offset:3200
    s_mov_b64 exec, -1
    v_mov_b32 v82, 0
    s_waitcnt lgkmcnt(0)
    s_barrier
    ds_read_b128 v[84:87], v82 offset:3200
    v_sub_u32 v80, v80, v78
    s_waitcnt lgkmcnt(0)
    v_readfirstlane_b32 s36, v84
    v_readfirstlane_b32 s37, v85
    v_readfirstlane_b32 s38, v86
    s_nop 3
    s_cmp_gt_u32 s3, 0
    s_cselect_b32 s36, s36, 0
    s_cmp_gt_u32 s3, 1
    s_cselect_b32 s37, s37, 0
    s_cmp_gt_u32 s3, 2
    s_cselect_b32 s38, s38, 0
    s_add_u32 s36, s36, s37
    s_add_u32 s36, s36, s38
    v_add_u32 v84, s36, v80
    v_add_u32 v85, v84, v72
    v_add_u32 v86, v84, v76
    v_add_u32 v87, v84, v77
    v_lshl_or_b32 v76, v72, 16, v84
    v_lshl_or_b32 v77, v73, 16, v85
    v_lshl_or_b32 v78, v74, 16, v86
    v_lshl_or_b32 v79, v75, 16, v87
    s_mul_i32 s28, s2, {TABW*4}
    s_add_u32 s28, s28, {WS_TAB}
    s_add_u32 s40, s26, s28
    s_addc_u32 s41, s27, 0
    s_mul_i32 s28, s2, {CHE*4}
    s_add_u32 s28, s28, {WS_EDG}
    s_add_u32 s42, s26, s28
    s_addc_u32 s43, s27, 0
    s_mov_b64 exec, s[32:33]
    ds_write_b128 v1, v[84:87]
    global_store_dwordx4 v1, v[76:79], s[40:41]
    s_mov_b64 exec, -1
    s_waitcnt lgkmcnt(0)
    s_barrier
    s_mov_b64 exec, s[30:31]""")
    for k in range(16):
        A(f"ds_read_b32 v{88+k}, v{BK+k}")
    A("s_waitcnt lgkmcnt(8)")
    for k in range(8):
        A(f"v_add_lshl_u32 v{88+k}, v{88+k}, v{RK+k}, 2")
    A("s_waitcnt lgkmcnt(0)")
    for k in range(8,16):
        A(f"v_add_lshl_u32 v{88+k}, v{88+k}, v{RK+k}, 2")
    for k in range(16):
        A(f"ds_write_b32 v{88+k}, v{S+k} offset:4096")
    A(f"""s_mov_b64 exec, -1
    s_waitcnt lgkmcnt(0)
    s_barrier
    s_mov_b64 exec, s[30:31]""")
    for i in range(4):
        A(f"ds_read_b128 {v(8+4*i,4)}, v1 offset:{4096+3200*i}")
    for i in range(4):
        A(f"""s_waitcnt lgkmcnt({3-i})
        global_store_dwordx4 v{1+(i>>1)}, {v(8+4*i,4)}, s[42:43] offset:{3200*(i&1)}""")
    A("s_endpgm")
    A(f"""K1_NOTBIN:
    v_and_b32 v3, 15, v2
    v_lshrrev_b32 v4, 4, v2
    v_lshrrev_b32 v5, 2, v3
    v_lshlrev_b32 v5, 11, v5
    v_and_b32 v6, 3, v3
    v_lshl_add_u32 v5, v6, 7, v5
    v_lshl_add_u32 v5, v4, 5, v5
    v_add_u32 v7, 48, v3
    v_lshlrev_b32 v7, 2, v7
    v_cmp_eq_u32 s[44:45], 3, v4
    s_cmp_ge_u32 s2, {K1_NBIN+K1_NLN}
    s_cbranch_scc1 K1_WEIGHTS""")
    X,WQ,WK,T,F,H,QQ=8,24,56,88,152,172,188
    srd(A,36,4,N*128)
    A(f"""s_sub_u32 s28, s2, {K1_NBIN}
    s_lshl_b32 s28, s28, 7
    s_lshl_b32 s29, s3, 5
    s_add_u32 s28, s28, s29
    v_add_u32 v1, s28, v3
    v_lshlrev_b32 v6, 7, v1
    v_lshl_add_u32 v2, v4, 5, v6""")
    for t in range(2):
        for h in range(2):
            A(f"buffer_load_dwordx4 {v(X+8*t+4*h,4)}, v2, s[36:39], 0 offen offset:{2048*t+16*h}")
    for arr,sb in ((WQ,14),(WK,16)):
        for mt in range(4):
            for ke in range(2):
                A(f"global_load_dwordx4 {v(arr+8*mt+4*ke,4)}, v5, s[{sb}:{sb+1}] offset:{512*mt+16*ke}")
    base(A,40,WS_HT); base(A,42,WS_QT)
    A(f"""s_mov_b32 s46, 0xffff0000
    s_mov_b32 s47, {f32(LOG2E_8)}
    s_mov_b32 s48, {f32(1e-5)}
    s_mov_b32 s49, {f32(-9.0*LOG2E_8)}
    s_mov_b32 s50, {f32(60.0)}
    s_mov_b32 s51, {f32(1.0/64)}
    s_movk_i32 s52, {N}
    v_bfe_u32 v220, v3, 1, 3
    v_lshlrev_b32 v221, 1, v4
    v_xor_b32 v220, v220, v221
    v_lshl_add_u32 v220, v220, 4, v6
    v_xor_b32 v221, 16, v220""")
    def ln(t):
        A(f"s_waitcnt vmcnt({16+2*(1-t)})")
        for i in range(8):
            A(f"""v_lshlrev_b32 v{F+2*i}, 16, v{X+8*t+i}
            v_and_b32 v{F+2*i+1}, s46, v{X+8*t+i}""")
        A(f"v_add_f32 v168, v{F}, v{F+1}\nv_add_f32 v169, v{F+2}, v{F+3}")
        for i in range(4,16,2):
            A(f"v_add_f32 v168, v168, v{F+i}\nv_add_f32 v169, v169, v{F+i+1}")
        A("v_add_f32 v168, v168, v169")
        xg_reduce(A,168,170,171)
        A("v_mul_f32 v168, s51, v168")
        for i in range(16): A(f"v_sub_f32 v{F+i}, v{F+i}, v168")
        A(f"v_mul_f32 v168, v{F}, v{F}\nv_mul_f32 v169, v{F+1}, v{F+1}")
        for i in range(2,16,2):
            A(f"v_fmac_f32 v168, v{F+i}, v{F+i}\nv_fmac_f32 v169, v{F+i+1}, v{F+i+1}")
        A("v_add_f32 v168, v168, v169")
        xg_reduce(A,168,170,171)
        A(f"""v_mov_b32 v169, s48
        v_fmac_f32 v169, s51, v168
        v_rsq_f32 v169, v169
        s_nop 0""")
        for i in range(16): A(f"v_mul_f32 v{F+i}, v169, v{F+i}")
        for i in range(8): A(f"v_cvt_pk_bf16_f32 v{H+8*t+i}, v{F+2*i}, v{F+2*i+1}")
    ln(0)
    A("s_waitcnt vmcnt(0)")
    for ke in range(2):
        for nt in range(4):
            for mt in range(4):
                A(m16(T+16*nt+4*mt, WQ+8*mt+4*ke, WK+8*nt+4*ke, "0" if ke==0 else None))
    ln(1)
    for i in range(32):
        A(f"v_cvt_pk_bf16_f32 v{WQ+i}, v{T+2*i}, v{T+2*i+1}")
    A("s_nop 1")
    for t in range(2):
        for ks in range(2):
            for nt in range(4):
                A(m16(QQ+16*t+4*nt, WQ+8*nt+4*ks, H+8*t+4*ks, "0" if ks==0 else None))
    for t in range(2):
        A(f"""v_add_u32 v168, {16*t}, v1
        v_cmp_gt_u32 vcc, s52, v168
        v_and_b32 v169, 0xffff, v{H+8*t+7}
        v_or_b32 v169, 0x3f800000, v169
        s_and_b64 vcc, vcc, s[44:45]
        v_cndmask_b32 v{H+8*t+7}, v{H+8*t+7}, v169, vcc
        global_store_dwordx4 v220, {v(H+8*t,4)}, s[40:41] offset:{2048*t}
        global_store_dwordx4 v221, {v(H+8*t+4,4)}, s[40:41] offset:{2048*t}""")
    A("s_nop 7")
    for t in range(2):
        q=QQ+16*t
        A(f"""ds_bpermute_b32 v{F+t}, v7, v{q+15}
        v_mul_f32 v168, v{q}, v{q}
        v_mul_f32 v169, v{q+1}, v{q+1}""")
        for i in range(2,16,2):
            A(f"v_fmac_f32 v168, v{q+i}, v{q+i}\nv_fmac_f32 v169, v{q+i+1}, v{q+i+1}")
        A("v_add_f32 v168, v168, v169")
        xg_reduce(A,168,170,171)
        A(f"""v_sqrt_f32 v168, v168
        v_mov_b32 v169, s50
        s_waitcnt lgkmcnt(0)
        v_fmac_f32 v169, s49, v168
        v_mul_f32 v{F+t}, s47, v{F+t}""")
        for i in range(16): A(f"v_fma_f32 v{q+i}, v{q+i}, s47, -v{F+t}")
        A(f"v_cndmask_b32 v{q+15}, v{q+15}, v169, s[44:45]")
        for i in range(8): A(f"v_cvt_pk_bf16_f32 v{X+8*t+i}, v{q+2*i}, v{q+2*i+1}")
        for h in range(2):
            A(f"global_store_dwordx4 v2, {v(X+8*t+4*h,4)}, s[42:43] offset:{2048*t+16*h}")
    A("s_endpgm")
    BF,AV,AM,T=8,16,48,80
    A(f"""K1_WEIGHTS:
    v_lshrrev_b32 v1, 2, v3
    v_lshlrev_b32 v1, 4, v1
    v_and_b32 v6, 3, v3
    v_add_u32 v1, v1, v6
    s_lshl_b32 s28, s3, 2
    v_add_u32 v1, s28, v1
    v_lshlrev_b32 v1, 1, v1
    v_lshl_add_u32 v1, v4, 11, v1
    v_lshlrev_b32 v6, 7, v3
    v_lshl_add_u32 v6, v4, 5, v6
    v_add_u32 v120, 4096, v6""")
    for ke in range(2):
        for j in range(8):
            A(f"global_load_ushort v{124+8*ke+j}, v1, s[20:21] offset:{(8*ke+j)*128}")
    for mt in range(4):
        for ke in range(2):
            A(f"global_load_dwordx4 {v(AV+8*mt+4*ke,4)}, v{6 if mt<2 else 120}, s[18:19] offset:{2048*(mt&1)+16*ke}")
            A(f"global_load_dwordx4 {v(AM+8*mt+4*ke,4)}, v5, s[12:13] offset:{512*mt+16*ke}")
    A(f"""s_lshl_b32 s28, s3, 11
    s_add_u32 s28, s28, {WS_WF}
    s_add_u32 s40, s26, s28
    s_addc_u32 s41, s27, 0
    v_lshlrev_b32 v1, 4, v2
    v_add_u32 v6, 8192, v1
    s_waitcnt vmcnt(0)""")
    for i in range(8): A(f"v_lshl_or_b32 v{BF+i}, v{124+2*i+1}, 16, v{124+2*i}")
    A("s_nop 1")
    for mat,arr in ((0,AV),(1,AM)):
        for ke in range(2):
            for mt in range(4):
                A(m16(T+16*mat+4*mt, arr+8*mt+4*ke, BF+4*ke, "0" if ke==0 else None))
    A("s_nop 7\ns_nop 1")
    for mat in range(2):
        A(f"ds_bpermute_b32 v{112+mat}, v7, v{T+16*mat+15}")
    A("s_waitcnt lgkmcnt(0)")
    for mat in range(2):
        for i in range(16): A(f"v_sub_f32 v{T+16*mat+i}, v{T+16*mat+i}, v{112+mat}")
        for i in range(8): A(f"v_cvt_pk_bf16_f32 v{AV+8*mat+i}, v{T+16*mat+2*i}, v{T+16*mat+2*i+1}")
        for ks in range(2):
            A(f"global_store_dwordx4 v{1 if mat==0 else 6}, {v(AV+8*mat+4*ks,4)}, s[40:41] offset:{1024*ks}")
    A("K1_END:\ns_endpgm")
    return kdesc(name,224)
```

```python
from common import *
K2_NATT=245; K2_GRID=251
LDS_DONE=65536; LDS_READY=66560; LDS_AG=67584; AGSZ=12352
K2_LDS=LDS_AG+3*AGSZ+64
NSTAGE=20
Q=16; O=48; S=112; P=144; KF=160; VF=192
VDONE=12; VDADDR=13; VRDY=14; VRADDR=15
def period(A,pi,lab_poll,lab_back):
    offk=8192*((pi+1)%8); offv=8192*pi
    for u in range(4):
        un=(u+1)%4; up=(u-1)%4
        Sm=[m16(S+16*(un%2)+4*ksub, KF+4*(2*ksub+ks), Q+4*(2*un+ks), "0" if ks==0 else None) for ksub in range(4) for ks in range(2)]
        Om=[m16(O+4*(4*up+dt), VF+4*(2*dt+h), P+8*(up%2)+4*h) for dt in range(4) for h in range(2)]
        mfs=Sm+Om
        post={i:[] for i in range(16)}
        def vread(r):
            k,uu=r>>1,r&1; dt,h=k>>1,k&1
            return f"ds_read_b64_tr_b16 {v(VF+4*k+2*uu,2)}, v{8+dt} offset:{offv+2048*(2*h+uu)}"
        if u==0:
            for r in range(7): post[9+r].append(vread(r))
        if u==1:
            post[7].append("s_waitcnt lgkmcnt(6)")
            for r in range(7,16): post[r-7].append(vread(r))
            post[11].append("s_waitcnt lgkmcnt(2)")
            post[14].append("s_waitcnt lgkmcnt(0)")
            if pi%2==1:
                post[15].append(f"ds_write_b32 v{VDADDR}, v{VDONE}")
        if u==2:
            for k in range(8):
                ksub,ks=k>>1,k&1
                post[k+1].append(f"ds_read_b128 {v(KF+4*k,4)}, v{4+ks} offset:{offk+2048*ksub}")
            post[15].append("s_waitcnt lgkmcnt(0)")
        if u==3 and pi%2==0:
            post[2].append(f"ds_read_b32 v{VRDY}, v{VRADDR}")
        s_=S+16*(u%2); p_=P+8*(u%2)
        for i in range(8):
            A(f"v_exp_f32 v{s_+2*i}, v{s_+2*i}")
            A(mfs[2*i])
            for x in post[2*i]: A(x)
            if u==1 and i==6 and pi%2==1:
                A(f"v_readfirstlane_b32 s40, v{VRDY}\nv_add_u32 v{VDONE}, 1, v{VDONE}")
            A(f"v_exp_f32 v{s_+2*i+1}, v{s_+2*i+1}")
            A(mfs[2*i+1])
            if u==2 and i==0 and pi%2==1:
                A(f"s_add_u32 s41, s41, 1")
                A(f"s_cmp_gt_u32 s40, s41\ns_cbranch_scc0 {lab_poll}\n{lab_back}:")
            if u==3 and i==7:
                A("s_add_u32 s42, s42, 1")
            for x in post[2*i+1]: A(x)
            A(f"v_cvt_pk_bf16_f32 v{p_+i}, v{s_+2*i}, v{s_+2*i+1}")

def gen_attention(A):
    A(f"""K2_ATT:
    s_setprio 3
    v_and_b32 v1, 15, v0
    v_lshrrev_b32 v2, 4, v0""")
    base(A,46,WS_QT)
    A(f"""s_lshl_b32 s28, s44, 8
    s_lshl_b32 s29, s3, 6
    s_add_u32 s28, s28, s29
    v_add_u32 v3, s28, v1
    v_lshlrev_b32 v3, 7, v3
    v_lshl_add_u32 v3, v2, 5, v3
    v_add_u32 v4, 4096, v3""")
    for u in range(4):
        for ks in range(2):
            A(f"global_load_dwordx4 {v(Q+8*u+4*ks,4)}, v{3+(u>>1)}, s[46:47] offset:{2048*(u&1)+16*ks}")
    lds_addr(A)
    for i in range(64): A(f"v_mov_b32 v{O+i}, 0")
    for i in range(8): A(f"v_mov_b32 v{P+8+i}, 0")
    for i in range(32): A(f"v_mov_b32 v{VF+i}, 0")
    A(f"""v_mov_b32 v{VDONE}, 0
    s_lshl_b32 s28, s3, 8
    s_add_u32 s28, s28, {LDS_DONE}
    v_lshlrev_b32 v{VDADDR}, 2, v0
    v_add_u32 v{VDADDR}, s28, v{VDADDR}
    v_mov_b32 v{VRADDR}, {LDS_READY}
    ds_write_b32 v{VDADDR}, v{VDONE}
    s_mov_b32 s41, 0
    s_mov_b32 s42, 0
    s_cmp_eq_u32 s45, 0
    s_cselect_b32 s43, 40, 39
    s_waitcnt vmcnt(0) lgkmcnt(0)
    s_barrier""")
    for k in range(8):
        ksub,ks=k>>1,k&1
        A(f"ds_read_b128 {v(KF+4*k,4)}, v{4+ks} offset:{2048*ksub}")
    A("s_waitcnt lgkmcnt(0)")
    for ksub in range(4):
        for ks in range(2):
            A(m16(S+4*ksub, KF+4*(2*ksub+ks), Q+4*ks, "0" if ks==0 else None))
    A("s_nop 7\n.p2align 6\nK2_LOOP:")
    polls=[]
    for pi in range(8):
        lp,lb=f"K2_POLL{pi}",f"K2_BACK{pi}"
        period(A,pi,lp,lb)
        if pi%2==1: polls.append((lp,lb))
        A("s_cmp_ge_u32 s42, s43")
        if pi<7: A("s_cbranch_scc1 K2_FIN")
        else: A("s_cbranch_scc0 K2_LOOP")
    A("K2_FIN:")
    for dt in range(4):
        for h in range(2):
            A(m16(O+4*(12+dt), VF+4*(2*dt+h), P+8+4*h))
    A(f"""s_mul_i32 s28, s45, 784
    s_lshl_b32 s29, s44, 4
    s_add_u32 s28, s28, s29
    s_lshl_b32 s29, s3, 2
    s_add_u32 s28, s28, s29
    s_lshl_b32 s29, s28, 11
    s_add_u32 s29, s29, {WS_PART}
    s_add_u32 s46, s26, s29
    s_addc_u32 s47, s27, 0
    s_lshl_b32 s29, s28, 6
    s_add_u32 s29, s29, {WS_LP}
    s_add_u32 s48, s26, s29
    s_addc_u32 s49, s27, 0
    v_lshlrev_b32 v3, 4, v0
    v_add_u32 v4, 4096, v3
    v_lshlrev_b32 v5, 2, v1""")
    for u in range(4):
        if u==3: A("s_nop 3")
        for i in range(8): A(f"v_cvt_pk_bf16_f32 v{S+8*u+i}, v{O+16*u+2*i}, v{O+16*u+2*i+1}")
        for ks in range(2):
            A(f"global_store_dwordx4 v{3+(u>>1)}, {v(S+8*u+4*ks,4)}, s[46:47] offset:{2048*(u&1)+1024*ks}")
    A("s_mov_b32 exec_lo, 0\ns_mov_b32 exec_hi, 0xffff0000")
    for u in range(4):
        A(f"global_store_dword v5, v{O+16*u+15}, s[48:49] offset:{64*u}")
    A("s_endpgm")
    for lp,lb in polls:
        A(f"""{lp}:
        s_mov_b32 s50, 0x100000
        {lp}_L:
        ds_read_b32 v{VRDY}, v{VRADDR}
        s_waitcnt lgkmcnt(0)
        v_readfirstlane_b32 s40, v{VRDY}
        s_nop 3
        s_cmp_gt_u32 s40, s41
        s_cbranch_scc1 {lb}
        s_sleep 1
        s_sub_u32 s50, s50, 1
        s_cmp_lg_u32 s50, 0
        s_cbranch_scc1 {lp}_L
        s_branch {lb}""")

def lds_addr(A,basereg=None):
    def kappa(dst,src,t):
        A(f"""v_and_b32 v{dst}, 1, v{src}
        v_bfe_u32 v{t}, v{src}, 3, 1
        v_lshl_or_b32 v{dst}, v{t}, 1, v{dst}
        v_bfe_u32 v{t}, v{src}, 1, 2
        v_lshl_or_b32 v{dst}, v{t}, 2, v{dst}""")
    kappa(6,1,7)
    A(f"""v_bfe_u32 v7, v6, 1, 3
    v_lshlrev_b32 v12, 1, v2
    v_xor_b32 v7, v7, v12
    v_lshlrev_b32 v7, 4, v7
    v_lshl_add_u32 v4, v6, 7, v7
    v_xor_b32 v5, 16, v4
    v_lshrrev_b32 v12, 2, v1
    v_lshl_or_b32 v12, v2, 2, v12""")
    kappa(6,12,7)
    A(f"""v_bfe_u32 v7, v6, 1, 3
    v_bfe_u32 v13, v1, 1, 1
    v_xor_b32 v7, v7, v13
    v_lshlrev_b32 v7, 4, v7
    v_lshl_add_u32 v7, v6, 7, v7
    v_and_b32 v13, 1, v1
    v_lshl_add_u32 v8, v13, 3, v7
    v_xor_b32 v9, 32, v8
    v_xor_b32 v10, 64, v8
    v_xor_b32 v11, 0x60, v8""")
    if basereg is not None:
        for r in (4,5,8,9,10,11): A(f"v_add_u32 v{r}, s{basereg}, v{r}")

def dma_stage(A,slot_sgpr_lds,soff):
    for i in range(4):
        A(f"s_mov_b32 m0, s{slot_sgpr_lds}\ns_add_u32 s{slot_sgpr_lds}, s{slot_sgpr_lds}, 4096")
        for j in range(4):
            A(f"buffer_load_dwordx4 v3, s[36:39], s{soff} offen offset:{1024*j} lds")
        A(f"s_add_u32 s{soff}, s{soff}, 4096")

def gen_producer(A):
    A(f"""K2_PROD:
    s_setprio 2
    s_add_u32 s53, s52, 16384
    s_mov_b32 s54, 16384""")
    for st in range(3): dma_stage(A,54,53)
    A(f"""v_mov_b32 v4, {LDS_READY}
    v_mov_b32 v5, 1
    ds_write_b32 v4, v5
    v_and_b32 v6, 3, v0
    v_lshlrev_b32 v6, 8, v6
    v_add_u32 v6, {LDS_DONE}, v6
    s_waitcnt vmcnt(48) lgkmcnt(0)
    s_barrier
    s_waitcnt vmcnt(32)
    v_mov_b32 v5, 2
    ds_write_b32 v4, v5
    s_waitcnt vmcnt(16)
    v_mov_b32 v5, 3
    ds_write_b32 v4, v5
    s_mov_b32 s55, 4
    K2_PL:
    s_sub_u32 s56, s55, 3
    s_mov_b32 s50, 0x100000
    K2_PP:
    ds_read_b32 v7, v6
    s_waitcnt lgkmcnt(0)
    v_cmp_gt_u32 vcc, s56, v7
    s_nop 4
    s_cbranch_vccz K2_PGO
    s_sleep 2
    s_sub_u32 s50, s50, 1
    s_cmp_lg_u32 s50, 0
    s_cbranch_scc1 K2_PP
    K2_PGO:
    s_and_b32 s54, s54, 0xffff""")
    dma_stage(A,54,53)
    A(f"""v_mov_b32 v5, s55
    s_waitcnt vmcnt(16)
    ds_write_b32 v4, v5
    s_add_u32 s55, s55, 1
    s_cmp_lt_u32 s55, {NSTAGE}
    s_cbranch_scc1 K2_PL
    v_mov_b32 v5, 0x7fffffff
    s_waitcnt vmcnt(0)
    ds_write_b32 v4, v5
    s_waitcnt lgkmcnt(0)
    s_endpgm""")

def gen_k2(A,name="k2_kernel",agg=None):
    kstart(A,name)
    A(f"""s_cmp_ge_u32 s2, {K2_GRID}
    s_cbranch_scc1 K2_END""")
    load_args(A)
    A(f"""v_lshrrev_b32 v1, 6, v0
    v_and_b32 v0, 63, v0
    s_nop 0
    v_readfirstlane_b32 s3, v1
    s_mul_hi_u32 s44, s2, 0x33333334
    s_mul_i32 s45, s44, 5
    s_sub_u32 s45, s2, s45
    v_lshlrev_b32 v3, 4, v0
    s_waitcnt lgkmcnt(0)""")
    srd(A,36,26,HT_BYTES,WS_HT)
    A(f"""s_cmp_ge_u32 s2, {K2_NATT}
    s_cbranch_scc1 K2_XAGG
    s_mul_i32 s52, s45, {39*8192}
    s_cmp_eq_u32 s45, 0
    s_cselect_b32 s28, 0, 8192
    s_add_u32 s52, s52, s28
    s_lshl_b32 s28, s3, 11
    s_mov_b32 m0, s28
    s_add_u32 s29, s52, s28
    buffer_load_dwordx4 v3, s[36:39], s29 offen lds
    buffer_load_dwordx4 v3, s[36:39], s29 offen offset:1024 lds
    s_cmp_lt_u32 s3, 4
    s_cbranch_scc1 K2_ATT
    s_cmp_eq_u32 s3, 4
    s_cbranch_scc1 K2_PROD
    s_mul_i32 s60, s2, 3
    s_add_u32 s60, s60, s3
    s_sub_u32 s60, s60, 5
    s_sub_u32 s61, s3, 5
    s_mul_i32 s61, s61, {AGSZ}
    s_add_u32 s61, s61, {LDS_AG}
    s_mov_b32 s62, 1
    s_branch K2_AGG
    K2_XAGG:
    s_sub_u32 s60, s2, {K2_NATT}
    s_lshl_b32 s60, s60, 3
    s_add_u32 s60, s60, s3
    s_add_u32 s60, s60, {3*K2_NATT}
    s_cmp_ge_u32 s60, {NB}
    s_cbranch_scc1 K2_END
    s_mul_i32 s61, s3, {AGSZ}
    s_mov_b32 s62, 0
    K2_AGG:""")
    if agg: agg(A)
    else:
        A("""s_cmp_eq_u32 s62, 0
        s_cbranch_scc1 K2_END
        s_waitcnt vmcnt(0)
        s_barrier""")
    A("K2_END:\ns_endpgm")
    gen_producer(A)
    gen_attention(A)
    return kdesc(name,224)
```

```python
from common import *
import k2
K3_GRID=196; K3_LDS=16384
def gen_k3(A,name="k3_kernel"):
    PT,W,B,X,L,ACA,ACB=16,56,120,128,136,144,160
    kstart(A,name)
    A(f"""s_cmp_ge_u32 s2, {K3_GRID}
    s_cbranch_scc1 K3_END""")
    load_args(A)
    A(f"""v_lshrrev_b32 v1, 6, v0
    v_and_b32 v0, 63, v0
    s_nop 0
    v_readfirstlane_b32 s3, v1
    s_lshl_b32 s28, s2, 2
    s_nop 1
    s_add_u32 s28, s28, s3
    s_cmp_ge_u32 s28, {NB}
    s_cbranch_scc1 K3_END
    v_and_b32 v1, 15, v0
    v_lshrrev_b32 v2, 4, v0
    v_lshlrev_b32 v3, 4, v0
    s_lshl_b32 s29, s28, 4
    v_add_u32 v14, s29, v1
    v_lshlrev_b32 v15, 7, v14
    v_lshl_add_u32 v15, v2, 5, v15
    v_lshlrev_b32 v13, 2, v14
    s_waitcnt lgkmcnt(0)
    s_lshl_b32 s29, s28, 11
    s_add_u32 s29, s29, {WS_PART}
    s_add_u32 s30, s26, s29
    s_addc_u32 s31, s27, 0""")
    base(A,32,WS_LP)
    for sp in range(5):
        for ks in range(2):
            A(f"global_load_dwordx4 {v(PT+8*sp+4*ks,4)}, v3, s[30:31] offset:{1024*ks}")
        A(f"global_load_dword v{L+sp}, v13, s[32:33]")
        if sp<4:
            A(f"""s_add_u32 s30, s30, {784*2048}
            s_addc_u32 s31, s31, 0
            s_add_u32 s32, s32, {784*64}
            s_addc_u32 s33, s33, 0""")
    base(A,34,WS_WF)
    for f in range(16):
        if f%4==0 and f: A("s_add_u32 s34, s34, 4096\ns_addc_u32 s35, s35, 0")
        A(f"global_load_dwordx4 {v(W+4*f,4)}, v3, s[34:35] offset:{1024*(f%4)}")
    base(A,40,WS_BL)
    srd(A,44,4,N*128); srd(A,48,22,N*128)
    for ks in range(2):
        A(f"global_load_dwordx4 {v(B+4*ks,4)}, v15, s[40:41] offset:{16*ks}")
    for ks in range(2):
        A(f"buffer_load_dwordx4 {v(X+4*ks,4)}, v15, s[44:47], 0 offen offset:{16*ks}")
    A(f"""s_waitcnt vmcnt(12)
    v_add_f32 v{L}, v{L}, v{L+1}
    v_add_f32 v{L+2}, v{L+2}, v{L+3}
    v_add_f32 v{L}, v{L}, v{L+4}
    v_add_f32 v{L}, v{L}, v{L+2}
    s_mov_b32 s52, {f32(2.0**-64)}
    s_movk_i32 s53, {N}
    v_cmp_nle_f32 vcc, s52, v{L}
    v_cmp_gt_u32 s[54:55], s53, v14
    v_rcp_f32 v{L+1}, v{L}
    s_nop 3
    s_and_b64 vcc, vcc, s[54:55]
    s_cbranch_vccnz K3_SLOW""")
    first=True
    for sp in range(5):
        for ks in range(2):
            for et in range(4):
                A(m16(ACA+4*et, W+4*(2*et+ks), PT+8*sp+4*ks, "0" if (sp==0 and ks==0) else None))
    A("K3_JOIN:\ns_waitcnt vmcnt(2)")
    for ks in range(2):
        for et in range(4):
            A(m16(ACB+4*et, W+32+4*(2*et+ks), B+4*ks, "0" if ks==0 else None))
    A("s_mov_b32 s56, 0xffff0000\ns_waitcnt vmcnt(0)")
    for i in range(8):
        A(f"""v_lshlrev_b32 v{PT+2*i}, 16, v{X+i}
        v_and_b32 v{PT+2*i+1}, s56, v{X+i}""")
    for i in range(16): A(f"v_fmac_f32 v{PT+i}, v{ACA+i}, v{L+1}")
    for i in range(16): A(f"v_add_f32 v{PT+i}, v{PT+i}, v{ACB+i}")
    for i in range(8): A(f"v_cvt_pk_bf16_f32 v{X+i}, v{PT+2*i}, v{PT+2*i+1}")
    for ks in range(2):
        A(f"buffer_store_dwordx4 {v(X+4*ks,4)}, v15, s[48:51], 0 offen offset:{16*ks}")
    A("K3_END:\ns_endpgm")
    Q,O,S,P,KF,VF,ST,M=176,184,200,208,16,32,212,228
    A("K3_SLOW:\ns_waitcnt vmcnt(0)")
    base(A,58,WS_QT); base(A,60,WS_HT)
    for ks in range(2):
        A(f"global_load_dwordx4 {v(Q+4*ks,4)}, v15, s[58:59] offset:{16*ks}")
    A("s_lshl_b32 s62, s3, 12")
    k2.lds_addr(A,62)
    A(f"""v_add_u32 v6, s62, v3
    v_lshrrev_b32 v7, 1, v2
    v_lshlrev_b32 v7, 1, v7
    v_and_b32 v12, 1, v2
    v_lshl_or_b32 v7, v12, 3, v7
    v_mov_b32 v{M}, {f32(-3e38)}
    v_mov_b32 v{M+1}, {f32(-3e38)}
    s_movk_i32 s63, {N}""")
    for i in range(16): A(f"v_mov_b32 v{O+i}, 0")
    A("K3_SL:")
    for i in range(4): A(f"global_load_dwordx4 {v(ST+4*i,4)}, v3, s[60:61] offset:{1024*i}")
    A("s_add_u32 s60, s60, 4096\ns_addc_u32 s61, s61, 0\ns_waitcnt vmcnt(0)")
    for i in range(4): A(f"ds_write_b128 v6, {v(ST+4*i,4)} offset:{1024*i}")
    A("s_waitcnt lgkmcnt(0)")
    for k in range(4): A(f"ds_read_b128 {v(KF+4*k,4)}, v{4+(k&1)} offset:{2048*(k>>1)}")
    for dt in range(4):
        for uu in range(2): A(f"ds_read_b64_tr_b16 {v(VF+4*dt+2*uu,2)}, v{8+dt} offset:{2048*uu}")
    A("s_waitcnt lgkmcnt(0)")
    for ksub in range(2):
        for ks in range(2): A(m16(S+4*ksub,KF+4*(2*ksub+ks),Q+4*ks,"0" if ks==0 else None))
    A("s_nop 7\ns_nop 1")
    for ksub in range(2):
        for r in range(4):
            c=16*ksub+(r&1)+((r>>1)<<2)
            A(f"""s_sub_i32 s64, s63, {c}
            v_cmp_gt_i32 vcc, s64, v7
            s_nop 1
            v_cndmask_b32 v{S+4*ksub+r}, v{M+1}, v{S+4*ksub+r}, vcc""")
    A(f"""v_max3_f32 v{M+2}, v{S}, v{S+1}, v{M}
    v_max3_f32 v{M+2}, v{S+2}, v{S+3}, v{M+2}
    v_max3_f32 v{M+2}, v{S+4}, v{S+5}, v{M+2}
    v_max3_f32 v{M+2}, v{S+6}, v{S+7}, v{M+2}""")
    xg_reduce(A,M+2,M+3,M+4,"v_max_f32")
    A(f"""v_sub_f32 v{M+3}, v{M}, v{M+2}
    v_exp_f32 v{M+3}, v{M+3}
    v_mov_b32 v{M}, v{M+2}""")
    for i in range(8): A(f"v_sub_f32 v{S+i}, v{S+i}, v{M}")
    for i in range(8): A(f"v_exp_f32 v{S+i}, v{S+i}")
    for i in range(16): A(f"v_mul_f32 v{O+i}, v{M+3}, v{O+i}")
    for i in range(4): A(f"v_cvt_pk_bf16_f32 v{P+i}, v{S+2*i}, v{S+2*i+1}")
    A("s_nop 1")
    for dt in range(4): A(m16(O+4*dt,VF+4*dt,P))
    A(f"""s_sub_i32 s63, s63, 32
    s_cmp_gt_i32 s63, 0
    s_cbranch_scc1 K3_SL
    v_add_u32 v12, 48, v1
    v_lshlrev_b32 v12, 2, v12
    s_nop 7
    ds_bpermute_b32 v13, v12, v{O+15}
    s_waitcnt lgkmcnt(0)
    v_rcp_f32 v13, v13
    s_nop 0""")
    for i in range(16): A(f"v_mul_f32 v{O+i}, v13, v{O+i}")
    for i in range(8): A(f"v_cvt_pk_bf16_f32 v{S+i}, v{O+2*i}, v{O+2*i+1}")
    A(f"v_mov_b32 v{L+1}, 1.0\ns_nop 0")
    for ks in range(2):
        for et in range(4):
            A(m16(ACA+4*et, W+4*(2*et+ks), S+4*ks, "0" if ks==0 else None))
    A("s_branch K3_JOIN")
    return kdesc(name,240)
```

```python
import sys,os
from common import *
import k1,k2,k3,agg
HDR=open("standalone__hybrid_graph_tf_graphgps__graph.s.ref").read().split("; Override launch")[0]
def build(out):
    A=Asm()
    d1=k1.gen_k1(A); d2=k2.gen_k2(A,agg=None if os.environ.get('NOAGG') else agg.gen_agg); d3=k3.gen_k3(A)
    txt=HDR
    txt+=f"; @launch kernel=k1_kernel grid=({k1.K1_GRID},1,1) block=(256,1,1) lds={k1.K1_LDS}\n"
    txt+=f"; @launch kernel=k2_kernel grid=({k2.K2_GRID},1,1) block=(512,1,1) lds={k2.K2_LDS}\n"
    txt+=f"; @launch kernel=k3_kernel grid=({k3.K3_GRID},1,1) block=(256,1,1) lds={k3.K3_LDS}\n"
    txt+='.amdgcn_target "amdgcn-amd-amdhsa--gfx950"\n'+A.text()+d1+d2+d3
    open(out,"w").write(txt)
if __name__=="__main__":
    build(sys.argv[1] if len(sys.argv)>1 else "standalone__hybrid_graph_tf_graphgps__graph.s")
```

```python
from common import *
AGSZ=12544
LIST=256; ACC=4352
TB=8; AD=12; EN=16; RK=64
AS=48; AC=52
VL=60; VA=61; VC=62; VB=63
G0=64; ID=184; VP=56; VQ=57
GFLAG=os.environ.get('GFLAG','')
NOMM=os.environ.get('NOMM')
NOGATH=os.environ.get('NOGATH')
NULL2=(N<<16)|N
def reset_lists(A):
    A(f"""v_mov_b32 v4, {NULL2}
    v_mov_b32 v5, v4
    v_mov_b32 v6, v4
    v_mov_b32 v7, v4
    v_lshlrev_b32 v2, 4, v0
    v_add_u32 v2, s61, v2""")
    for i in range(4): A(f"ds_write_b128 v2, v[4:7] offset:{LIST+1024*i}")
    A(f"ds_write_b32 v{VC}, v{VB}")
def gen_agg(A):
    srd(A,64,26,NCH*TABW*4,WS_TAB)
    base(A,68,WS_EDG)
    A(f"""s_add_u32 s56, s26, {WS_HT}
    s_addc_u32 s57, s27, 0
    s_or_b32 s57, s57, {128<<16}
    s_mov_b32 s58, {NP}
    s_mov_b32 s59, 0x00020000
    s_mov_b32 s63, 0
    AG_START:
    s_lshl_b32 s28, s60, 2
    v_mul_u32_u24 v1, {TABW*4}, v0
    v_add_u32 v1, s28, v1""")
    for i in range(4):
        A(f"s_mov_b32 s28, {64*TABW*4*i}\nbuffer_load_dword v{TB+i}, v1, s[64:67], s28 offen")
    A(f"""v_and_b32 v2, 15, v0
    v_lshlrev_b32 v3, 4, v2
    v_mov_b32 v4, 0x3f80
    v_mov_b32 v5, 0
    v_lshlrev_b64 v[{AS}:{AS+1}], v3, v[4:5]
    v_mov_b32 v6, v{AS}
    v_mov_b32 v7, v{AS+1}
    v_cmp_gt_u32 vcc, 4, v2
    v_lshrrev_b32 v3, 2, v2
    v_cmp_eq_u32 s[72:73], 1, v3
    v_cndmask_b32 v{AS}, 0, v6, vcc
    v_cndmask_b32 v{AS+1}, 0, v7, vcc
    v_cndmask_b32 v{AS+2}, 0, v6, s[72:73]
    v_cndmask_b32 v{AS+3}, 0, v7, s[72:73]
    v_lshl_add_u32 v{VC}, v2, 2, s61
    s_add_u32 s28, s61, {LIST}
    v_lshl_add_u32 v{VB}, v2, 8, s28
    v_lshrrev_b32 v3, 3, v0
    v_lshl_add_u32 v{VL}, v3, 1, s61
    v_and_b32 v3, 7, v0
    v_lshlrev_b32 v{ID+1}, 4, v3
    v_and_b32 v3, 31, v0
    v_lshl_add_u32 v{VA}, v3, 4, s61""")
    for j in range(1,30): A(f"v_mov_b32 v{ID+2*j+1}, v{ID+1}")
    reset_lists(A)
    A("v_mov_b32 v4, 0\nv_mov_b32 v5, 0\nv_mov_b32 v6, 0\nv_mov_b32 v7, 0")
    for i in range(8): A(f"ds_write_b128 v2, v[4:7] offset:{ACC+1024*i}")
    A(f"""v_mov_b32 v6, 2
    v_mov_b32 v7, s61
    s_waitcnt vmcnt(0) lgkmcnt(0)
    s_cmp_eq_u32 s62, 0
    s_cbranch_scc1 AG_NOBAR
    s_mov_b32 s62, 0
    s_barrier
    AG_NOBAR:
    s_getpc_b64 s[70:71]
    AG_PC:
    s_add_u32 s70, s70, AG_PROC-AG_PC
    s_addc_u32 s71, s71, 0
    v_mul_u32_u24 v3, {CHE*4}, v0""")
    for i in range(4):
        A(f"""v_and_b32 v2, 0xffff, v{TB+i}
        v_lshl_add_u32 v{AD+i}, v2, 2, v3
        v_lshrrev_b32 v{TB+i}, 16, v{TB+i}""")
        if i<3: A(f"v_add_u32 v3, {64*CHE*4}, v3")
    stamp(A,1)
    A("AG_ROUND:")
    for i in range(4):
        for h in range(2):
            l=A.lab("AGL")
            A(f"""v_cmpx_lt_u32 vcc, {4*h}, v{TB+i}
            s_cbranch_execz {l}
            global_load_dwordx4 {v(EN+8*i+4*h,4)}, v{AD+i}, s[68:69] offset:{16*h}
            {l}:""")
        A("s_mov_b64 exec, -1")
    A(f"""s_cmp_lg_u32 s63, 0
    s_cbranch_scc1 AG_CAREFUL
    s_waitcnt vmcnt(0)""")
    def masks(i,sb):
        for t in range(8): A(f"v_cmp_lt_u32 s[{sb+2*t}:{sb+2*t+1}], {t}, v{TB+i}")
        for t in range(8):
            A(f"v_add_u32_sdwa v{RK+8*i+t}, v{EN+8*i+t}, v7 dst_sel:DWORD dst_unused:UNUSED_PAD src0_sel:WORD_1 src1_sel:DWORD")
    def ops(i,sb,fmt):
        l=A.lab("AGO")
        for t in range(8):
            A(f"s_mov_b64 exec, s[{sb+2*t}:{sb+2*t+1}]")
            if t in (0,2,4): A(f"s_cbranch_execz {l}")
            A(fmt.format(a=RK+8*i+t,e=EN+8*i+t))
        A(f"{l}:\ns_mov_b64 exec, -1")
    for pair in range(2):
        i0,i1=2*pair,2*pair+1
        masks(i0,40); ops(i0,40,"ds_add_rtn_u32 v{a}, v{a}, v6")
        masks(i1,72); ops(i1,72,"ds_add_rtn_u32 v{a}, v{a}, v6")
        A("s_waitcnt lgkmcnt(0)")
        ops(i0,40,"ds_write_b16 v{a}, v{e}"); ops(i1,72,"ds_write_b16 v{a}, v{e}")
    A(f"""ds_read_b32 v2, v{VC}
    s_movk_i32 s28, 256
    s_waitcnt lgkmcnt(0)
    v_sub_u32 v2, v2, v{VB}
    v_cmp_lt_u32 vcc, s28, v2
    s_nop 4
    s_cbranch_vccz AG_NEXT
    s_mov_b32 s63, 1
    s_branch AG_START""")
    A("AG_CAREFUL:\ns_waitcnt vmcnt(0)")
    for i in range(4):
        for h in range(2):
            e=EN+8*i+4*h
            skip=A.lab("AGS"); retry=A.lab("AGR")
            for k in range(4):
                A(f"v_cmp_lt_u32 s[{72+2*k}:{73+2*k}], {4*h+k}, v{TB+i}")
            A(f"""s_nop 3
            s_cmp_eq_u64 s[72:73], 0
            s_cbranch_scc1 {skip}
            {retry}:""")
            for k in range(4):
                A(f"""v_lshrrev_b32 v{RK+4+k}, 16, v{e+k}
                v_add_u32 v2, s61, v{RK+4+k}
                s_mov_b64 exec, s[{72+2*k}:{73+2*k}]
                ds_add_rtn_u32 v{RK+k}, v2, v6
                s_mov_b64 exec, -1""")
            A(f"s_add_u32 s28, s61, {LIST+256}\ns_waitcnt lgkmcnt(0)")
            for k in range(4):
                A(f"""v_lshl_add_u32 v2, v{RK+4+k}, 6, s28
                v_cmp_gt_u32 vcc, v2, v{RK+k}
                s_nop 3
                s_and_b64 exec, vcc, s[{72+2*k}:{73+2*k}]
                ds_write_b16 v{RK+k}, v{e+k}
                s_andn2_b64 s[{72+2*k}:{73+2*k}], s[{72+2*k}:{73+2*k}], exec
                s_mov_b64 exec, -1""")
            A(f"""s_or_b64 s[80:81], s[72:73], s[74:75]
            s_or_b64 s[82:83], s[76:77], s[78:79]
            s_or_b64 s[80:81], s[80:81], s[82:83]
            s_cbranch_scc0 {skip}
            s_swappc_b64 s[84:85], s[70:71]
            s_branch {retry}
            {skip}:""")
    A("AG_NEXT:")
    for i in range(4):
        A(f"""v_sub_u32 v{TB+i}, v{TB+i}, 8 clamp
        v_add_u32 v{AD+i}, 32, v{AD+i}""")
    A(f"""v_or_b32 v2, v{TB}, v{TB+1}
    v_or3_b32 v2, v2, v{TB+2}, v{TB+3}
    v_cmp_ne_u32 vcc, 0, v2
    s_nop 4
    s_cbranch_vccnz AG_ROUND""")
    stamp(A,2)
    A("s_swappc_b64 s[84:85], s[70:71]")
    srd(A,64,10,N*2)
    A(f"""s_lshl_b32 s28, s60, 5
    v_lshrrev_b32 v2, 2, v0
    v_lshl_add_u32 v2, v2, 1, s28
    buffer_load_ushort v3, v2, s[64:67], 0 offen
    v_lshrrev_b32 v4, 2, v0
    v_lshlrev_b32 v4, 9, v4
    v_and_b32 v5, 3, v0
    v_lshl_add_u32 v4, v5, 5, v4
    v_add_u32 v4, s61, v4""")
    for e0 in range(2):
        for c in range(2):
            for g in range(2): A(f"ds_read_b128 {v(G0+16*e0+8*c+4*g,4)}, v4 offset:{ACC+16*c+256*g+128*e0}")
    A(f"""s_lshl_b32 s28, s60, 11
    s_add_u32 s28, s28, {WS_BL}
    s_add_u32 s68, s26, s28
    s_addc_u32 s69, s27, 0
    v_lshlrev_b32 v5, 5, v0
    s_waitcnt vmcnt(0) lgkmcnt(0)
    v_lshlrev_b32 v3, 16, v3""")
    for i in range(16): A(f"v_add_f32 v{G0+i}, v{G0+i}, v{G0+16+i}")
    for i in range(16): A(f"v_mul_f32 v{G0+i}, v3, v{G0+i}")
    for i in range(8): A(f"v_cvt_pk_bf16_f32 v{EN+i}, v{G0+2*i}, v{G0+2*i+1}")
    A(f"""global_store_dwordx4 v5, {v(EN,4)}, s[68:69]
    global_store_dwordx4 v5, {v(EN+4,4)}, s[68:69] offset:16""")
    stamp_out(A,1,8)
    A("s_endpgm")
    NG=10
    def gs(k,j): return G0+4*NG*k+4*j
    def idr(k,j): return ID+2*NG*k+2*j
    extras=[]
    def ids(k):
        for j in range(NG): A(f"ds_read_u16 v{idr(k,j)}, v{VP} offset:{LIST+16*j}")
        A(f"v_add_u32 v{VP}, 0x100, v{VP}")
    def gath(k):
        for j in range(NG): A(f"buffer_load_dwordx4 {v(gs(k,j),4)}, {v(idr(k,j),2)}, s[56:59], 0 idxen offen")
    def mm(k,kfree,back):
        for j in range(NG): A(m16(AC,AS,gs(k,j)))
        x=A.lab("AGX"); r=A.lab("AGY")
        A(f"""s_bitcmp1_b32 s86, s30
        s_cbranch_scc1 {x}
        {r}:
        s_add_u32 s30, s30, 1
        s_mov_b32 exec_lo, s31
        s_mov_b32 exec_hi, 0
        s_nop 3""")
        A(f"""ds_write_b128 v{VQ}, {v(AC,4)}
        s_mov_b64 exec, -1
        v_add_u32 v{VQ}, 0x200, v{VQ}""")
        extras.append((x,r,k,kfree,back))
    A(f"""AG_PROC:
    s_waitcnt lgkmcnt(0)
    ds_read_b32 v2, v{VC}
    v_mov_b32 v{VP}, v{VL}
    v_add_u32 v{VQ}, {ACC-1024}, v{VA}
    s_movk_i32 s28, {16*NG}""")
    ids(0)
    A(f"""s_waitcnt lgkmcnt({NG})
    v_sub_u32 v2, v2, v{VB}
    v_cmp_lt_u32 vcc, s28, v2
    s_mov_b32 s30, 0
    s_mov_b32 s31, 0
    s_mov_b32 s29, 5
    s_nop 1
    s_and_b32 s86, vcc_lo, 0xffff
    s_lshl_b32 s86, s86, 2
    AG_PL:""")
    for k in range(3):
        A("s_waitcnt lgkmcnt(0)")
        gath(k)
        A(f"ds_read_b128 {v(AC,4)}, v{VQ}")
        ids((k+1)%3)
        A(f"s_waitcnt vmcnt({2*NG}) lgkmcnt({NG})")
        mm((k+1)%3,(k+2)%3,4*256)
        if k==1: A("s_mov_b32 s31, -1")
    A("""s_sub_u32 s29, s29, 1
    s_cmp_lg_u32 s29, 0
    s_cbranch_scc1 AG_PL
    s_waitcnt lgkmcnt(0)""")
    gath(0)
    rd=f"ds_read_b128 {v(AC,4)}, v{VQ}\n"
    A(rd+f"s_waitcnt vmcnt({2*NG}) lgkmcnt(0)"); mm(1,2,3*256)
    A(rd+f"s_waitcnt vmcnt({NG}) lgkmcnt(0)"); mm(2,1,2*256)
    A(rd+"s_waitcnt vmcnt(0) lgkmcnt(0)"); mm(0,1,1*256)
    reset_lists(A)
    A(f"""s_waitcnt lgkmcnt(0)
    s_setpc_b64 s[84:85]""")
    for x,r,k,kf,back in extras:
        A(f"{x}:\nv_subrev_u32 v2, {back}, v{VP}")
        for j in range(16-NG): A(f"ds_read_u16 v{idr(kf,j)}, v2 offset:{LIST+16*(NG+j)}")
        A("s_waitcnt lgkmcnt(0)")
        for j in range(16-NG): A(f"buffer_load_dwordx4 {v(gs(k,j),4)}, {v(idr(kf,j),2)}, s[56:59], 0 idxen offen")
        A("s_waitcnt vmcnt(0)")
        for j in range(16-NG): A(m16(AC,AS,gs(k,j)))
        A(f"s_nop 3\ns_branch {r}")
```

```python
import math, struct
N=12500; NP=12544; E=800000
NCH=250; CHE=3200; NB=782; TABW=784
WS_HT=0x000000; WS_QT=0x200000; WS_WF=0x400000; WS_TAB=0x410000; WS_EDG=0x500000
WS_BL=0x900000; WS_PART=0xB00000; WS_LP=0x1400000
HT_BYTES=NP*128
LOG2E_8=math.log2(math.e)/8.0
def f32(x): return "0x%08x"%struct.unpack("<I",struct.pack("<f",x))[0]
def v(b,n=1): return f"v{b}" if n==1 else f"v[{b}:{b+n-1}]"
def s(b,n=1): return f"s{b}" if n==1 else f"s[{b}:{b+n-1}]"
class Asm:
    def __init__(self): self.L=[]; self.n=0
    def __call__(self,txt):
        for line in txt.split("\n"):
            line=line.strip()
            if not line: continue
            if line.endswith(":") or line.startswith("."): self.L.append(line)
            else: self.L.append("    "+line)
    def lab(self,p="L"):
        self.n+=1; return f"{p}_{self.n}"
    def text(self): return "\n".join(self.L)+"\n"
def m16(d,a,b,c=None):
    cc=v(d,4) if c is None else c
    return f"v_mfma_f32_16x16x32_bf16 {v(d,4)}, {v(a,4)}, {v(b,4)}, {cc}"
def kstart(A,name):
    A(f""".text
.globl {name}
.p2align 8
.type {name},@function
{name}:""")
def kdesc(name,vgpr,sgpr=102):
    return f""".section .rodata,"a"
.p2align 6
.amdhsa_kernel {name}
  .amdhsa_next_free_vgpr {vgpr}
  .amdhsa_next_free_sgpr {sgpr}
  .amdhsa_accum_offset {(vgpr+3)//4*4}
  .amdhsa_group_segment_fixed_size 0
  .amdhsa_kernarg_size 96
  .amdhsa_user_sgpr_count 2
  .amdhsa_user_sgpr_kernarg_segment_ptr 1
  .amdhsa_system_sgpr_workgroup_id_x 1
.end_amdhsa_kernel
"""
def load_args(A):
    A("""s_load_dwordx16 s[4:19], s[0:1], 0
    s_load_dwordx8 s[20:27], s[0:1], 64""")
def base(A,d,off,src=26):
    A(f"""s_add_u32 s{d}, s{src}, {off}
    s_addc_u32 s{d+1}, s{src+1}, 0""")
def srd(A,d,src,nbytes,off=0):
    if off:
        A(f"""s_add_u32 s{d}, s{src}, {off}
        s_addc_u32 s{d+1}, s{src+1}, 0""")
    else:
        A(f"""s_mov_b32 s{d}, s{src}
        s_mov_b32 s{d+1}, s{src+1}""")
    A(f"""s_mov_b32 s{d+2}, {nbytes}
    s_mov_b32 s{d+3}, 0x00020000""")
def xg_reduce(A,x,t0,t1,op="v_add_f32"):
    A(f"""v_mov_b32 v{t0}, v{x}
    v_mov_b32 v{t1}, v{x}
    s_nop 1
    v_permlane16_swap_b32 v{t0}, v{t1}
    s_nop 1
    {op} v{x}, v{t0}, v{t1}
    v_mov_b32 v{t0}, v{x}
    v_mov_b32 v{t1}, v{x}
    s_nop 1
    v_permlane32_swap_b32 v{t0}, v{t1}
    s_nop 1
    {op} v{x}, v{t0}, v{t1}""")

import os
DIAG=bool(os.environ.get("DIAG"))
WS_DIAG=0x2000000
def stamp(A,i):
    if DIAG: A(f"s_memrealtime s[{92+2*i}:{93+2*i}]")
def cyc(A,i):
    if DIAG: A(f"s_memtime s[{64+2*i}:{65+2*i}]")
def stamp_out(A,kidx,nw,cycles=False):
    if DIAG:
        A(f"""s_memrealtime s[98:99]
        s_mul_i32 s28, s2, {nw}
        s_add_u32 s28, s28, s3
        s_lshl_b32 s28, s28, 4
        s_add_u32 s28, s28, {WS_DIAG+kidx*0x100000}
        s_mov_b64 exec, -1
        s_waitcnt lgkmcnt(0)
        v_mov_b32 v2, s28
        v_mov_b32 v4, s92
        v_mov_b32 v5, s94
        v_mov_b32 v6, s96
        v_mov_b32 v7, s98
        global_store_dwordx4 v2, v[4:7], s[26:27]""")
        if cycles:
            A(f"""s_sub_u32 s64, s66, s64
            v_mov_b32 v4, s64
            v_add_u32 v2, 0x200000, v2
            global_store_dwordx4 v2, v[4:7], s[26:27]""")
```

```python
from common import *
K1_NBIN=NCH; K1_NLN=98; K1_GRID=K1_NBIN+K1_NLN+1; K1_LDS=16896
def gen_k1(A,name="k1_kernel"):
    kstart(A,name)
    A(f"""s_cmp_ge_u32 s2, {K1_GRID}
    s_cbranch_scc1 K1_END""")
    load_args(A)
    stamp(A,0)
    A(f"""v_lshrrev_b32 v1, 6, v0
    v_and_b32 v2, 63, v0
    s_nop 0
    v_readfirstlane_b32 s3, v1
    s_waitcnt lgkmcnt(0)
    s_cmp_ge_u32 s2, {K1_NBIN}
    s_cbranch_scc1 K1_NOTBIN""")
    D,S,BK,RK=8,24,40,56
    A(f"""s_movk_i32 s34, 200
    s_movk_i32 s35, 196
    v_lshlrev_b32 v1, 4, v0
    v_add_u32 v2, 6400, v1
    v_cmp_gt_u32 s[30:31], s34, v0
    v_cmp_gt_u32 s[32:33], s35, v0
    s_mul_i32 s28, s2, {CHE*4}
    s_add_u32 s6, s6, s28
    s_addc_u32 s7, s7, 0
    s_add_u32 s8, s8, s28
    s_addc_u32 s9, s9, 0
    v_mov_b32 v4, 0
    v_mov_b32 v5, 0
    v_mov_b32 v6, 0
    v_mov_b32 v7, 0
    v_mov_b32 v3, 1
    s_nop 3
    s_mov_b64 exec, s[30:31]""")
    for arr,sb in ((D,8),(S,6)):
        for i in range(4):
            A(f"global_load_dwordx4 {v(arr+4*i,4)}, v{1+(i>>1)}, s[{sb}:{sb+1}] offset:{3200*(i&1)}")
    A(f"""s_mov_b64 exec, s[32:33]
    ds_write_b128 v1, v[4:7]
    s_mov_b64 exec, -1
    v_mov_b32 v72, 0
    v_mov_b32 v73, 0
    v_mov_b32 v74, 0
    v_mov_b32 v75, 0
    s_waitcnt lgkmcnt(0)
    s_barrier
    s_mov_b64 exec, s[30:31]
    s_waitcnt vmcnt(4)""")
    stamp(A,1)
    for k in range(16):
        A(f"""v_lshrrev_b32 v{BK+k}, 2, v{D+k}
        v_and_b32 v{BK+k}, -4, v{BK+k}
        ds_add_rtn_u32 v{RK+k}, v{BK+k}, v3""")
    A("s_waitcnt vmcnt(0)")
    for k in range(16):
        A(f"""v_and_b32 v4, 15, v{D+k}
        v_lshl_or_b32 v{S+k}, v4, 18, v{S+k}""")
    A(f"""s_mov_b64 exec, -1
    s_waitcnt lgkmcnt(0)
    s_barrier
    s_mov_b64 exec, s[32:33]
    ds_read_b128 v[72:75], v1
    s_mov_b64 exec, -1
    s_waitcnt lgkmcnt(0)
    v_add_u32 v76, v72, v73
    v_add_u32 v77, v76, v74
    v_add_u32 v78, v77, v75
    v_mov_b32 v80, v78
    s_nop 1""")
    for sh in (1,2,4,8):
        A(f"""v_add_u32_dpp v80, v80, v80 row_shr:{sh} row_mask:0xf bank_mask:0xf bound_ctrl:0
        s_nop 1""")
    A(f"""v_add_u32_dpp v80, v80, v80 row_bcast:15 row_mask:0xa bank_mask:0xf
    s_nop 1
    v_add_u32_dpp v80, v80, v80 row_bcast:31 row_mask:0xc bank_mask:0xf
    s_lshl_b32 s28, s3, 2
    v_mov_b32 v81, s28
    s_mov_b32 exec_lo, 0
    s_mov_b32 exec_hi, 0x80000000
    ds_write_b32 v81, v80 offset:3200
    s_mov_b64 exec, -1
    v_mov_b32 v82, 0
    s_waitcnt lgkmcnt(0)
    s_barrier
    ds_read_b128 v[84:87], v82 offset:3200
    v_sub_u32 v80, v80, v78
    s_waitcnt lgkmcnt(0)
    v_readfirstlane_b32 s36, v84
    v_readfirstlane_b32 s37, v85
    v_readfirstlane_b32 s38, v86
    s_nop 3
    s_cmp_gt_u32 s3, 0
    s_cselect_b32 s36, s36, 0
    s_cmp_gt_u32 s3, 1
    s_cselect_b32 s37, s37, 0
    s_cmp_gt_u32 s3, 2
    s_cselect_b32 s38, s38, 0
    s_add_u32 s36, s36, s37
    s_add_u32 s36, s36, s38
    v_add_u32 v84, s36, v80
    v_add_u32 v85, v84, v72
    v_add_u32 v86, v84, v76
    v_add_u32 v87, v84, v77
    v_lshl_or_b32 v76, v72, 16, v84
    v_lshl_or_b32 v77, v73, 16, v85
    v_lshl_or_b32 v78, v74, 16, v86
    v_lshl_or_b32 v79, v75, 16, v87
    s_mul_i32 s28, s2, {TABW*4}
    s_add_u32 s28, s28, {WS_TAB}
    s_add_u32 s40, s26, s28
    s_addc_u32 s41, s27, 0
    s_mul_i32 s28, s2, {CHE*4}
    s_add_u32 s28, s28, {WS_EDG}
    s_add_u32 s42, s26, s28
    s_addc_u32 s43, s27, 0
    s_mov_b64 exec, s[32:33]
    ds_write_b128 v1, v[84:87]
    global_store_dwordx4 v1, v[76:79], s[40:41]
    s_mov_b64 exec, -1
    s_waitcnt lgkmcnt(0)
    s_barrier
    s_mov_b64 exec, s[30:31]""")
    for k in range(16):
        A(f"ds_read_b32 v{88+k}, v{BK+k}")
    A("s_waitcnt lgkmcnt(8)")
    for k in range(8):
        A(f"v_add_lshl_u32 v{88+k}, v{88+k}, v{RK+k}, 2")
    A("s_waitcnt lgkmcnt(0)")
    for k in range(8,16):
        A(f"v_add_lshl_u32 v{88+k}, v{88+k}, v{RK+k}, 2")
    for k in range(16):
        A(f"ds_write_b32 v{88+k}, v{S+k} offset:4096")
    A(f"""s_mov_b64 exec, -1
    s_waitcnt lgkmcnt(0)
    s_barrier
    s_mov_b64 exec, s[30:31]""")
    stamp(A,2)
    for i in range(4):
        A(f"ds_read_b128 {v(8+4*i,4)}, v1 offset:{4096+3200*i}")
    for i in range(4):
        A(f"""s_waitcnt lgkmcnt({3-i})
        global_store_dwordx4 v{1+(i>>1)}, {v(8+4*i,4)}, s[42:43] offset:{3200*(i&1)}""")
    if DIAG: A("s_waitcnt vmcnt(0)")
    stamp_out(A,0,4)
    A("s_endpgm")
    A(f"""K1_NOTBIN:
    v_and_b32 v3, 15, v2
    v_lshrrev_b32 v4, 4, v2
    v_lshrrev_b32 v5, 2, v3
    v_lshlrev_b32 v5, 11, v5
    v_and_b32 v6, 3, v3
    v_lshl_add_u32 v5, v6, 7, v5
    v_lshl_add_u32 v5, v4, 5, v5
    v_add_u32 v7, 48, v3
    v_lshlrev_b32 v7, 2, v7
    v_cmp_eq_u32 s[44:45], 3, v4
    s_cmp_ge_u32 s2, {K1_NBIN+K1_NLN}
    s_cbranch_scc1 K1_WEIGHTS""")
    X,WQ,WK,T,F,H,QQ=8,24,56,88,152,172,188
    srd(A,36,4,N*128)
    A(f"""s_sub_u32 s28, s2, {K1_NBIN}
    s_lshl_b32 s28, s28, 7
    s_lshl_b32 s29, s3, 5
    s_add_u32 s28, s28, s29
    v_add_u32 v1, s28, v3
    v_lshlrev_b32 v6, 7, v1
    v_lshl_add_u32 v2, v4, 5, v6""")
    for t in range(2):
        for h in range(2):
            A(f"buffer_load_dwordx4 {v(X+8*t+4*h,4)}, v2, s[36:39], 0 offen offset:{2048*t+16*h}")
    for arr,sb in ((WQ,14),(WK,16)):
        for mt in range(4):
            for ke in range(2):
                A(f"global_load_dwordx4 {v(arr+8*mt+4*ke,4)}, v5, s[{sb}:{sb+1}] offset:{512*mt+16*ke}")
    base(A,40,WS_HT); base(A,42,WS_QT)
    A(f"""s_mov_b32 s46, 0xffff0000
    s_mov_b32 s47, {f32(LOG2E_8)}
    s_mov_b32 s48, {f32(1e-5)}
    s_mov_b32 s49, {f32(-9.0*LOG2E_8)}
    s_mov_b32 s50, {f32(60.0)}
    s_mov_b32 s51, {f32(1.0/64)}
    s_movk_i32 s52, {N}
""")
    def ln(t):
        A(f"s_waitcnt vmcnt({16+2*(1-t)})")
        for i in range(8):
            A(f"""v_lshlrev_b32 v{F+2*i}, 16, v{X+8*t+i}
            v_and_b32 v{F+2*i+1}, s46, v{X+8*t+i}""")
        A(f"v_add_f32 v168, v{F}, v{F+1}\nv_add_f32 v169, v{F+2}, v{F+3}")
        for i in range(4,16,2):
            A(f"v_add_f32 v168, v168, v{F+i}\nv_add_f32 v169, v169, v{F+i+1}")
        A("v_add_f32 v168, v168, v169")
        xg_reduce(A,168,170,171)
        A("v_mul_f32 v168, s51, v168")
        for i in range(16): A(f"v_sub_f32 v{F+i}, v{F+i}, v168")
        A(f"v_mul_f32 v168, v{F}, v{F}\nv_mul_f32 v169, v{F+1}, v{F+1}")
        for i in range(2,16,2):
            A(f"v_fmac_f32 v168, v{F+i}, v{F+i}\nv_fmac_f32 v169, v{F+i+1}, v{F+i+1}")
        A("v_add_f32 v168, v168, v169")
        xg_reduce(A,168,170,171)
        A(f"""v_mov_b32 v169, s48
        v_fmac_f32 v169, s51, v168
        v_rsq_f32 v169, v169
        s_nop 0""")
        for i in range(16): A(f"v_mul_f32 v{F+i}, v169, v{F+i}")
        for i in range(8): A(f"v_cvt_pk_bf16_f32 v{H+8*t+i}, v{F+2*i}, v{F+2*i+1}")
    ln(0)
    stamp(A,1)
    A("s_waitcnt vmcnt(0)")
    stamp(A,2)
    for ke in range(2):
        for nt in range(4):
            for mt in range(4):
                A(m16(T+16*nt+4*mt, WQ+8*mt+4*ke, WK+8*nt+4*ke, "0" if ke==0 else None))
    ln(1)
    for i in range(32):
        A(f"v_cvt_pk_bf16_f32 v{WQ+i}, v{T+2*i}, v{T+2*i+1}")
    A("s_nop 1")
    for t in range(2):
        for ks in range(2):
            for nt in range(4):
                A(m16(QQ+16*t+4*nt, WQ+8*nt+4*ks, H+8*t+4*ks, "0" if ks==0 else None))
    for t in range(2):
        A(f"""v_add_u32 v168, {16*t}, v1
        v_cmp_gt_u32 vcc, s52, v168
        v_and_b32 v169, 0xffff, v{H+8*t+7}
        v_or_b32 v169, 0x3f800000, v169
        s_and_b64 vcc, vcc, s[44:45]
        v_cndmask_b32 v{H+8*t+7}, v{H+8*t+7}, v169, vcc
        global_store_dwordx4 v2, {v(H+8*t,4)}, s[40:41] offset:{2048*t}
        global_store_dwordx4 v2, {v(H+8*t+4,4)}, s[40:41] offset:{2048*t+16}""")
    A("s_nop 7")
    for t in range(2):
        q=QQ+16*t
        A(f"""ds_bpermute_b32 v{F+t}, v7, v{q+15}
        v_mul_f32 v168, v{q}, v{q}
        v_mul_f32 v169, v{q+1}, v{q+1}""")
        for i in range(2,16,2):
            A(f"v_fmac_f32 v168, v{q+i}, v{q+i}\nv_fmac_f32 v169, v{q+i+1}, v{q+i+1}")
        A("v_add_f32 v168, v168, v169")
        xg_reduce(A,168,170,171)
        A(f"""v_sqrt_f32 v168, v168
        v_mov_b32 v169, s50
        s_waitcnt lgkmcnt(0)
        v_fmac_f32 v169, s49, v168
        v_mul_f32 v{F+t}, s47, v{F+t}""")
        for i in range(16): A(f"v_fma_f32 v{q+i}, v{q+i}, s47, -v{F+t}")
        A(f"v_cndmask_b32 v{q+15}, v{q+15}, v169, s[44:45]")
        for i in range(8): A(f"v_cvt_pk_bf16_f32 v{X+8*t+i}, v{q+2*i}, v{q+2*i+1}")
        for h in range(2):
            A(f"global_store_dwordx4 v2, {v(X+8*t+4*h,4)}, s[42:43] offset:{2048*t+16*h}")
    if DIAG: A("s_waitcnt vmcnt(0)")
    stamp_out(A,0,4)
    A("s_endpgm")
    BF,AV,AM,T=8,16,48,80
    A(f"""K1_WEIGHTS:
    v_lshrrev_b32 v1, 2, v3
    v_lshlrev_b32 v1, 4, v1
    v_and_b32 v6, 3, v3
    v_add_u32 v1, v1, v6
    s_lshl_b32 s28, s3, 2
    v_add_u32 v1, s28, v1
    v_lshlrev_b32 v1, 1, v1
    v_lshl_add_u32 v1, v4, 11, v1
    v_lshlrev_b32 v6, 7, v3
    v_lshl_add_u32 v6, v4, 5, v6
    v_add_u32 v120, 4096, v6""")
    for ke in range(2):
        for j in range(8):
            A(f"global_load_ushort v{124+8*ke+j}, v1, s[20:21] offset:{(8*ke+j)*128}")
    for mt in range(4):
        for ke in range(2):
            A(f"global_load_dwordx4 {v(AV+8*mt+4*ke,4)}, v{6 if mt<2 else 120}, s[18:19] offset:{2048*(mt&1)+16*ke}")
            A(f"global_load_dwordx4 {v(AM+8*mt+4*ke,4)}, v5, s[12:13] offset:{512*mt+16*ke}")
    A(f"""s_lshl_b32 s28, s3, 11
    s_add_u32 s28, s28, {WS_WF}
    s_add_u32 s40, s26, s28
    s_addc_u32 s41, s27, 0
    v_lshlrev_b32 v1, 4, v2
    v_add_u32 v6, 8192, v1
    s_waitcnt vmcnt(0)""")
    for i in range(8): A(f"v_lshl_or_b32 v{BF+i}, v{124+2*i+1}, 16, v{124+2*i}")
    A("s_nop 1")
    for mat,arr in ((0,AV),(1,AM)):
        for ke in range(2):
            for mt in range(4):
                A(m16(T+16*mat+4*mt, arr+8*mt+4*ke, BF+4*ke, "0" if ke==0 else None))
    A("s_nop 7\ns_nop 1")
    for mat in range(2):
        A(f"ds_bpermute_b32 v{112+mat}, v7, v{T+16*mat+15}")
    A("s_waitcnt lgkmcnt(0)")
    for mat in range(2):
        for i in range(16): A(f"v_sub_f32 v{T+16*mat+i}, v{T+16*mat+i}, v{112+mat}")
        for i in range(8): A(f"v_cvt_pk_bf16_f32 v{AV+8*mat+i}, v{T+16*mat+2*i}, v{T+16*mat+2*i+1}")
        for ks in range(2):
            A(f"global_store_dwordx4 v{1 if mat==0 else 6}, {v(AV+8*mat+4*ks,4)}, s[40:41] offset:{1024*ks}")
    A("K1_END:\ns_endpgm")
    return kdesc(name,224)
```

```python
from common import *
K2_NATT=245; K2_GRID=251
LDS_DONE=65536; LDS_READY=66560; LDS_AG=67584; AGSZ=12544
K2_LDS=LDS_AG+3*AGSZ+64
NSTAGE=20
Q=16; O=48; S=112; P=144; KF=160; VF=192
VDONE=12; VDADDR=13; VRDY=14; VRADDR=15
def period(A,pi,lab_poll,lab_back):
    offk=8192*((pi+1)%8); offv=8192*pi
    for u in range(4):
        un=(u+1)%4; up=(u-1)%4
        Sm=[m16(S+16*(un%2)+4*ksub, KF+4*(2*ksub+ks), Q+4*(2*un+ks), "0" if ks==0 else None) for ksub in range(4) for ks in range(2)]
        Om=[m16(O+4*(4*up+dt), VF+4*(2*dt+h), P+8*(up%2)+4*h) for dt in range(4) for h in range(2)]
        mfs=Sm+Om
        post={i:[] for i in range(16)}
        def vread(r):
            k,uu=r>>1,r&1; dt,h=k>>1,k&1
            return f"ds_read_b64_tr_b16 {v(VF+4*k+2*uu,2)}, v{8+dt} offset:{offv+2048*(2*h+uu)}"
        if u==0:
            for r in range(7): post[9+r].append(vread(r))
        if u==1:
            post[7].append("s_waitcnt lgkmcnt(6)")
            for r in range(7,16): post[r-7].append(vread(r))
            post[11].append("s_waitcnt lgkmcnt(2)")
            post[14].append("s_waitcnt lgkmcnt(0)")
            if pi%2==1:
                post[15].append(f"ds_write_b32 v{VDADDR}, v{VDONE}")
        if u==2:
            for k in range(8):
                ksub,ks=k>>1,k&1
                post[k+1].append(f"ds_read_b128 {v(KF+4*k,4)}, v{4+ks} offset:{offk+2048*ksub}")
            post[15].append("s_waitcnt lgkmcnt(0)")
        if u==3 and pi%2==0:
            post[2].append(f"ds_read_b32 v{VRDY}, v{VRADDR}")
        s_=S+16*(u%2); p_=P+8*(u%2)
        for i in range(8):
            A(f"v_exp_f32 v{s_+2*i}, v{s_+2*i}")
            A(mfs[2*i])
            for x in post[2*i]: A(x)
            if u==1 and i==6 and pi%2==1:
                A(f"v_readfirstlane_b32 s40, v{VRDY}\nv_add_u32 v{VDONE}, 1, v{VDONE}")
            A(f"v_exp_f32 v{s_+2*i+1}, v{s_+2*i+1}")
            A(mfs[2*i+1])
            if u==2 and i==0 and pi%2==1:
                A(f"s_add_u32 s41, s41, 1")
                A(f"s_cmp_gt_u32 s40, s41\ns_cbranch_scc0 {lab_poll}\n{lab_back}:")
            if u==3 and i==7:
                A("s_add_u32 s42, s42, 1")
            for x in post[2*i+1]: A(x)
            A(f"v_cvt_pk_bf16_f32 v{p_+i}, v{s_+2*i}, v{s_+2*i+1}")

def gen_attention(A):
    A(f"""K2_ATT:
    s_setprio 3
    v_and_b32 v1, 15, v0
    v_lshrrev_b32 v2, 4, v0""")
    base(A,46,WS_QT)
    A(f"""s_lshl_b32 s28, s44, 8
    s_lshl_b32 s29, s3, 6
    s_add_u32 s28, s28, s29
    v_add_u32 v3, s28, v1
    v_lshlrev_b32 v3, 7, v3
    v_lshl_add_u32 v3, v2, 5, v3
    v_add_u32 v4, 4096, v3""")
    for u in range(4):
        for ks in range(2):
            A(f"global_load_dwordx4 {v(Q+8*u+4*ks,4)}, v{3+(u>>1)}, s[46:47] offset:{2048*(u&1)+16*ks}")
    lds_addr(A)
    for i in range(64): A(f"v_mov_b32 v{O+i}, 0")
    for i in range(8): A(f"v_mov_b32 v{P+8+i}, 0")
    for i in range(32): A(f"v_mov_b32 v{VF+i}, 0")
    A(f"""v_mov_b32 v{VDONE}, 0
    s_lshl_b32 s28, s3, 8
    s_add_u32 s28, s28, {LDS_DONE}
    v_lshlrev_b32 v{VDADDR}, 2, v0
    v_add_u32 v{VDADDR}, s28, v{VDADDR}
    v_mov_b32 v{VRADDR}, {LDS_READY}
    ds_write_b32 v{VDADDR}, v{VDONE}
    s_mov_b32 s41, 0
    s_mov_b32 s42, 0
    s_cmp_eq_u32 s45, 0
    s_cselect_b32 s43, 40, 39
    s_waitcnt vmcnt(0) lgkmcnt(0)
    s_barrier""")
    stamp(A,1); cyc(A,0)
    for k in range(8):
        ksub,ks=k>>1,k&1
        A(f"ds_read_b128 {v(KF+4*k,4)}, v{4+ks} offset:{2048*ksub}")
    A("s_waitcnt lgkmcnt(0)")
    for ksub in range(4):
        for ks in range(2):
            A(m16(S+4*ksub, KF+4*(2*ksub+ks), Q+4*ks, "0" if ks==0 else None))
    A("s_nop 7\n.p2align 6\nK2_LOOP:")
    polls=[]
    for pi in range(8):
        lp,lb=f"K2_POLL{pi}",f"K2_BACK{pi}"
        period(A,pi,lp,lb)
        if pi%2==1: polls.append((lp,lb))
        A("s_cmp_ge_u32 s42, s43")
        if pi<7: A("s_cbranch_scc1 K2_FIN")
        else: A("s_cbranch_scc0 K2_LOOP")
    A("K2_FIN:")
    stamp(A,2); cyc(A,1)
    for dt in range(4):
        for h in range(2):
            A(m16(O+4*(12+dt), VF+4*(2*dt+h), P+8+4*h))
    A(f"""s_mul_i32 s28, s45, 784
    s_lshl_b32 s29, s44, 4
    s_add_u32 s28, s28, s29
    s_lshl_b32 s29, s3, 2
    s_add_u32 s28, s28, s29
    s_lshl_b32 s29, s28, 11
    s_add_u32 s29, s29, {WS_PART}
    s_add_u32 s46, s26, s29
    s_addc_u32 s47, s27, 0
    s_lshl_b32 s29, s28, 6
    s_add_u32 s29, s29, {WS_LP}
    s_add_u32 s48, s26, s29
    s_addc_u32 s49, s27, 0
    v_lshlrev_b32 v3, 4, v0
    v_add_u32 v4, 4096, v3
    v_lshlrev_b32 v5, 2, v1""")
    for u in range(4):
        if u==3: A("s_nop 3")
        for i in range(8): A(f"v_cvt_pk_bf16_f32 v{S+8*u+i}, v{O+16*u+2*i}, v{O+16*u+2*i+1}")
        for ks in range(2):
            A(f"global_store_dwordx4 v{3+(u>>1)}, {v(S+8*u+4*ks,4)}, s[46:47] offset:{2048*(u&1)+1024*ks}")
    A("s_mov_b32 exec_lo, 0\ns_mov_b32 exec_hi, 0xffff0000")
    for u in range(4):
        A(f"global_store_dword v5, v{O+16*u+15}, s[48:49] offset:{64*u}")
    if DIAG: A("s_waitcnt vmcnt(0)")
    stamp_out(A,1,8,True)
    A("s_endpgm")
    for lp,lb in polls:
        A(f"""{lp}:
        s_mov_b32 s50, 0x100000
        {lp}_L:
        ds_read_b32 v{VRDY}, v{VRADDR}
        s_waitcnt lgkmcnt(0)
        v_readfirstlane_b32 s40, v{VRDY}
        s_nop 3
        s_cmp_gt_u32 s40, s41
        s_cbranch_scc1 {lb}
        s_sleep 1
        s_sub_u32 s50, s50, 1
        s_cmp_lg_u32 s50, 0
        s_cbranch_scc1 {lp}_L
        s_branch {lb}""")

def lds_addr(A,basereg=None):
    def kappa(dst,src,t):
        A(f"""v_and_b32 v{dst}, 1, v{src}
        v_bfe_u32 v{t}, v{src}, 3, 1
        v_lshl_or_b32 v{dst}, v{t}, 1, v{dst}
        v_bfe_u32 v{t}, v{src}, 1, 2
        v_lshl_or_b32 v{dst}, v{t}, 2, v{dst}""")
    kappa(6,1,7)
    A(f"""v_bfe_u32 v7, v6, 1, 3
    v_lshlrev_b32 v12, 1, v2
    v_xor_b32 v7, v7, v12
    v_lshlrev_b32 v7, 4, v7
    v_lshl_add_u32 v4, v6, 7, v7
    v_xor_b32 v5, 16, v4
    v_lshrrev_b32 v12, 2, v1
    v_lshl_or_b32 v12, v2, 2, v12""")
    kappa(6,12,7)
    A(f"""v_bfe_u32 v7, v6, 1, 3
    v_bfe_u32 v13, v1, 1, 1
    v_xor_b32 v7, v7, v13
    v_lshlrev_b32 v7, 4, v7
    v_lshl_add_u32 v7, v6, 7, v7
    v_and_b32 v13, 1, v1
    v_lshl_add_u32 v8, v13, 3, v7
    v_xor_b32 v9, 32, v8
    v_xor_b32 v10, 64, v8
    v_xor_b32 v11, 0x60, v8""")
    if basereg is not None:
        for r in (4,5,8,9,10,11): A(f"v_add_u32 v{r}, s{basereg}, v{r}")

def swz_src(A,d0,d1,t):
    A(f"""v_and_b32 v{d0}, 7, v0
    v_lshrrev_b32 v{t}, 4, v0
    v_xor_b32 v{d0}, v{d0}, v{t}
    v_lshlrev_b32 v{d0}, 4, v{d0}
    v_lshrrev_b32 v{t}, 3, v0
    v_lshl_add_u32 v{d0}, v{t}, 7, v{d0}
    v_xor_b32 v{d1}, 64, v{d0}""")

def dma_stage(A,slot_sgpr_lds,soff):
    for i in range(4):
        A(f"s_mov_b32 m0, s{slot_sgpr_lds}\ns_add_u32 s{slot_sgpr_lds}, s{slot_sgpr_lds}, 4096")
        for j in range(4):
            A(f"buffer_load_dwordx4 v{2+(j&1)}, s[36:39], s{soff} offen offset:{1024*j} lds")
        A(f"s_add_u32 s{soff}, s{soff}, 4096")

def gen_producer(A):
    A(f"""K2_PROD:
    s_setprio 2
    s_add_u32 s53, s52, 16384
    s_mov_b32 s54, 16384""")
    for st in range(3): dma_stage(A,54,53)
    A(f"""v_mov_b32 v4, {LDS_READY}
    v_mov_b32 v5, 1
    ds_write_b32 v4, v5
    v_and_b32 v6, 3, v0
    v_lshlrev_b32 v6, 8, v6
    v_add_u32 v6, {LDS_DONE}, v6
    s_waitcnt vmcnt(48) lgkmcnt(0)
    s_barrier
    s_waitcnt vmcnt(32)
    v_mov_b32 v5, 2
    ds_write_b32 v4, v5
    s_waitcnt vmcnt(16)
    v_mov_b32 v5, 3
    ds_write_b32 v4, v5
    s_mov_b32 s55, 4
    K2_PL:
    s_sub_u32 s56, s55, 3
    s_mov_b32 s50, 0x100000
    K2_PP:
    ds_read_b32 v7, v6
    s_waitcnt lgkmcnt(0)
    v_cmp_gt_u32 vcc, s56, v7
    s_nop 4
    s_cbranch_vccz K2_PGO
    s_sleep 2
    s_sub_u32 s50, s50, 1
    s_cmp_lg_u32 s50, 0
    s_cbranch_scc1 K2_PP
    K2_PGO:
    s_and_b32 s54, s54, 0xffff""")
    dma_stage(A,54,53)
    A(f"""v_mov_b32 v5, s55
    s_waitcnt vmcnt(16)
    ds_write_b32 v4, v5
    s_add_u32 s55, s55, 1
    s_cmp_lt_u32 s55, {NSTAGE}
    s_cbranch_scc1 K2_PL
    v_mov_b32 v5, 0x7fffffff
    s_waitcnt vmcnt(0)
    ds_write_b32 v4, v5
    s_waitcnt lgkmcnt(0)""")
    stamp(A,1); stamp(A,2); stamp_out(A,1,8)
    A("s_endpgm")

def gen_k2(A,name="k2_kernel",agg=None):
    kstart(A,name)
    A(f"""s_cmp_ge_u32 s2, {K2_GRID}
    s_cbranch_scc1 K2_END""")
    load_args(A)
    stamp(A,0)
    A(f"""v_lshrrev_b32 v1, 6, v0
    v_and_b32 v0, 63, v0
    s_nop 0
    v_readfirstlane_b32 s3, v1
    s_mul_hi_u32 s44, s2, 0x33333334
    s_mul_i32 s45, s44, 5
    s_sub_u32 s45, s2, s45
""")
    swz_src(A,2,3,4)
    A("s_waitcnt lgkmcnt(0)")
    srd(A,36,26,HT_BYTES,WS_HT)
    A(f"""s_cmp_ge_u32 s2, {K2_NATT}
    s_cbranch_scc1 K2_XAGG
    s_mul_i32 s52, s45, {39*8192}
    s_cmp_eq_u32 s45, 0
    s_cselect_b32 s28, 0, 8192
    s_add_u32 s52, s52, s28
    s_lshl_b32 s28, s3, 11
    s_mov_b32 m0, s28
    s_add_u32 s29, s52, s28
    buffer_load_dwordx4 v2, s[36:39], s29 offen lds
    buffer_load_dwordx4 v3, s[36:39], s29 offen offset:1024 lds
    s_cmp_lt_u32 s3, 4
    s_cbranch_scc1 K2_ATT
    s_cmp_eq_u32 s3, 4
    s_cbranch_scc1 K2_PROD
    s_mul_i32 s60, s2, 3
    s_add_u32 s60, s60, s3
    s_sub_u32 s60, s60, 5
    s_sub_u32 s61, s3, 5
    s_mul_i32 s61, s61, {AGSZ}
    s_add_u32 s61, s61, {LDS_AG}
    s_mov_b32 s62, 1
    s_branch K2_AGG
    K2_XAGG:
    s_sub_u32 s60, s2, {K2_NATT}
    s_lshl_b32 s60, s60, 3
    s_add_u32 s60, s60, s3
    s_add_u32 s60, s60, {3*K2_NATT}
    s_cmp_ge_u32 s60, {NB}
    s_cbranch_scc1 K2_END
    s_mul_i32 s61, s3, {AGSZ}
    s_mov_b32 s62, 0
    K2_AGG:""")
    if agg: agg(A)
    else:
        A("""s_cmp_eq_u32 s62, 0
        s_cbranch_scc1 K2_END
        s_waitcnt vmcnt(0)
        s_barrier""")
    A("K2_END:\ns_endpgm")
    gen_producer(A)
    gen_attention(A)
    return kdesc(name,248)
```

```python
from common import *
import k2
K3_GRID=196; K3_LDS=16384
def gen_k3(A,name="k3_kernel"):
    PT,W,B,X,L,ACA,ACB=16,56,120,128,136,144,160
    kstart(A,name)
    A(f"""s_cmp_ge_u32 s2, {K3_GRID}
    s_cbranch_scc1 K3_END""")
    load_args(A)
    stamp(A,0)
    A(f"""v_lshrrev_b32 v1, 6, v0
    v_and_b32 v0, 63, v0
    s_nop 0
    v_readfirstlane_b32 s3, v1
    s_lshl_b32 s28, s2, 2
    s_nop 1
    s_add_u32 s28, s28, s3
    s_cmp_ge_u32 s28, {NB}
    s_cbranch_scc1 K3_END
    v_and_b32 v1, 15, v0
    v_lshrrev_b32 v2, 4, v0
    v_lshlrev_b32 v3, 4, v0
    s_lshl_b32 s29, s28, 4
    v_add_u32 v14, s29, v1
    v_lshlrev_b32 v15, 7, v14
    v_lshl_add_u32 v15, v2, 5, v15
    v_lshlrev_b32 v13, 2, v14
    s_waitcnt lgkmcnt(0)
    s_lshl_b32 s29, s28, 11
    s_add_u32 s29, s29, {WS_PART}
    s_add_u32 s30, s26, s29
    s_addc_u32 s31, s27, 0""")
    base(A,32,WS_LP)
    for sp in range(5):
        for ks in range(2):
            A(f"global_load_dwordx4 {v(PT+8*sp+4*ks,4)}, v3, s[30:31] offset:{1024*ks}")
        A(f"global_load_dword v{L+sp}, v13, s[32:33]")
        if sp<4:
            A(f"""s_add_u32 s30, s30, {784*2048}
            s_addc_u32 s31, s31, 0
            s_add_u32 s32, s32, {784*64}
            s_addc_u32 s33, s33, 0""")
    base(A,34,WS_WF)
    for f in range(16):
        if f%4==0 and f: A("s_add_u32 s34, s34, 4096\ns_addc_u32 s35, s35, 0")
        A(f"global_load_dwordx4 {v(W+4*f,4)}, v3, s[34:35] offset:{1024*(f%4)}")
    base(A,40,WS_BL)
    srd(A,44,4,N*128); srd(A,48,22,N*128)
    for ks in range(2):
        A(f"global_load_dwordx4 {v(B+4*ks,4)}, v15, s[40:41] offset:{16*ks}")
    for ks in range(2):
        A(f"buffer_load_dwordx4 {v(X+4*ks,4)}, v15, s[44:47], 0 offen offset:{16*ks}")
    A("s_waitcnt vmcnt(12)")
    stamp(A,1)
    A(f"""
    v_add_f32 v{L}, v{L}, v{L+1}
    v_add_f32 v{L+2}, v{L+2}, v{L+3}
    v_add_f32 v{L}, v{L}, v{L+4}
    v_add_f32 v{L}, v{L}, v{L+2}
    s_mov_b32 s52, {f32(2.0**-64)}
    s_movk_i32 s53, {N}
    v_cmp_nle_f32 vcc, s52, v{L}
    v_cmp_gt_u32 s[54:55], s53, v14
    v_rcp_f32 v{L+1}, v{L}
    s_nop 3
    s_and_b64 vcc, vcc, s[54:55]
    s_cbranch_vccnz K3_SLOW""")
    first=True
    for sp in range(5):
        for ks in range(2):
            for et in range(4):
                A(m16(ACA+4*et, W+4*(2*et+ks), PT+8*sp+4*ks, "0" if (sp==0 and ks==0) else None))
    A("K3_JOIN:\ns_waitcnt vmcnt(2)")
    for ks in range(2):
        for et in range(4):
            A(m16(ACB+4*et, W+32+4*(2*et+ks), B+4*ks, "0" if ks==0 else None))
    A("s_mov_b32 s56, 0xffff0000\ns_waitcnt vmcnt(0)")
    stamp(A,2)
    for i in range(8):
        A(f"""v_lshlrev_b32 v{PT+2*i}, 16, v{X+i}
        v_and_b32 v{PT+2*i+1}, s56, v{X+i}""")
    for i in range(16): A(f"v_fmac_f32 v{PT+i}, v{ACA+i}, v{L+1}")
    for i in range(16): A(f"v_add_f32 v{PT+i}, v{PT+i}, v{ACB+i}")
    for i in range(8): A(f"v_cvt_pk_bf16_f32 v{X+i}, v{PT+2*i}, v{PT+2*i+1}")
    for ks in range(2):
        A(f"buffer_store_dwordx4 {v(X+4*ks,4)}, v15, s[48:51], 0 offen offset:{16*ks}")
    if DIAG: A("s_waitcnt vmcnt(0)")
    stamp_out(A,2,4)
    A("K3_END:\ns_endpgm")
    Q,O,S,P,KF,VF,ST,M=176,184,200,208,16,32,212,228
    A("K3_SLOW:\ns_waitcnt vmcnt(0)")
    base(A,58,WS_QT); base(A,60,WS_HT)
    for ks in range(2):
        A(f"global_load_dwordx4 {v(Q+4*ks,4)}, v15, s[58:59] offset:{16*ks}")
    A("s_lshl_b32 s62, s3, 12")
    k2.lds_addr(A,62)
    A(f"""v_add_u32 v6, s62, v3
    v_lshrrev_b32 v7, 1, v2
    v_lshlrev_b32 v7, 1, v7
    v_and_b32 v12, 1, v2
    v_lshl_or_b32 v7, v12, 3, v7
    v_mov_b32 v{M}, {f32(-3e38)}
    v_mov_b32 v{M+1}, {f32(-3e38)}
    s_movk_i32 s63, {N}""")
    for i in range(16): A(f"v_mov_b32 v{O+i}, 0")
    k2.swz_src(A,M+5,M+6,M+7)
    A("K3_SL:")
    for i in range(4): A(f"global_load_dwordx4 {v(ST+4*i,4)}, v{M+5+(i&1)}, s[60:61] offset:{1024*i}")
    A("s_add_u32 s60, s60, 4096\ns_addc_u32 s61, s61, 0\ns_waitcnt vmcnt(0)")
    for i in range(4): A(f"ds_write_b128 v6, {v(ST+4*i,4)} offset:{1024*i}")
    A("s_waitcnt lgkmcnt(0)")
    for k in range(4): A(f"ds_read_b128 {v(KF+4*k,4)}, v{4+(k&1)} offset:{2048*(k>>1)}")
    for dt in range(4):
        for uu in range(2): A(f"ds_read_b64_tr_b16 {v(VF+4*dt+2*uu,2)}, v{8+dt} offset:{2048*uu}")
    A("s_waitcnt lgkmcnt(0)")
    for ksub in range(2):
        for ks in range(2): A(m16(S+4*ksub,KF+4*(2*ksub+ks),Q+4*ks,"0" if ks==0 else None))
    A("s_nop 7\ns_nop 1")
    for ksub in range(2):
        for r in range(4):
            c=16*ksub+(r&1)+((r>>1)<<2)
            A(f"""s_sub_i32 s64, s63, {c}
            v_cmp_gt_i32 vcc, s64, v7
            s_nop 1
            v_cndmask_b32 v{S+4*ksub+r}, v{M+1}, v{S+4*ksub+r}, vcc""")
    A(f"""v_max3_f32 v{M+2}, v{S}, v{S+1}, v{M}
    v_max3_f32 v{M+2}, v{S+2}, v{S+3}, v{M+2}
    v_max3_f32 v{M+2}, v{S+4}, v{S+5}, v{M+2}
    v_max3_f32 v{M+2}, v{S+6}, v{S+7}, v{M+2}""")
    xg_reduce(A,M+2,M+3,M+4,"v_max_f32")
    A(f"""v_sub_f32 v{M+3}, v{M}, v{M+2}
    v_exp_f32 v{M+3}, v{M+3}
    v_mov_b32 v{M}, v{M+2}""")
    for i in range(8): A(f"v_sub_f32 v{S+i}, v{S+i}, v{M}")
    for i in range(8): A(f"v_exp_f32 v{S+i}, v{S+i}")
    for i in range(16): A(f"v_mul_f32 v{O+i}, v{M+3}, v{O+i}")
    for i in range(4): A(f"v_cvt_pk_bf16_f32 v{P+i}, v{S+2*i}, v{S+2*i+1}")
    A("s_nop 1")
    for dt in range(4): A(m16(O+4*dt,VF+4*dt,P))
    A(f"""s_sub_i32 s63, s63, 32
    s_cmp_gt_i32 s63, 0
    s_cbranch_scc1 K3_SL
    v_add_u32 v12, 48, v1
    v_lshlrev_b32 v12, 2, v12
    s_nop 7
    ds_bpermute_b32 v13, v12, v{O+15}
    s_waitcnt lgkmcnt(0)
    v_rcp_f32 v13, v13
    s_nop 0""")
    for i in range(16): A(f"v_mul_f32 v{O+i}, v13, v{O+i}")
    for i in range(8): A(f"v_cvt_pk_bf16_f32 v{S+i}, v{O+2*i}, v{O+2*i+1}")
    A(f"v_mov_b32 v{L+1}, 1.0\ns_nop 0")
    for ks in range(2):
        for et in range(4):
            A(m16(ACA+4*et, W+4*(2*et+ks), S+4*ks, "0" if ks==0 else None))
    A("s_branch K3_JOIN")
    return kdesc(name,240)
```
